```python
import torch

def _softmax(x, axis=-1):
    return torch.softmax(x, dim=axis)

def _gelu(x):
    return torch.nn.functional.gelu(x, approximate='tanh')

def _silu(x):
    return torch.nn.functional.silu(x)

def _sigmoid(x):
    return torch.sigmoid(x)

def _layernorm(x, axis=-1, eps=1e-05):
    m = x.mean(dim=axis, keepdim=True)
    v = x.var(dim=axis, keepdim=True, unbiased=False)
    return (x - m) / torch.sqrt(v + eps)

def _scatter_add(tgt, idx, src, axis=0):
    return tgt.clone().index_add_(axis, idx, src)

def _segment_sum(src, seg, n):
    out = torch.zeros((n,) + src.shape[1:], dtype=src.dtype)
    return out.index_add_(0, seg, src)

def _pad(x, pw):
    flat = tuple((v for pair in reversed(pw) for v in pair))
    return torch.nn.functional.pad(x, flat)
kernel_name = 'adaLN_cond__memory_aug_recurrent_mem_tr__dense_activation_relu__prompt'

def setup_inputs():

    _w = lambda a: (lambda t: t.to(torch.bfloat16) if t.is_floating_point() else t)(torch.as_tensor(a))

    def _A_setup():
        B, S, Dm = (1, 2048, 1024)
        H, Dh = (32, 128)
        M, seg = (8, 32)
        seg = min(seg, S)
        S = S // seg * seg
        return {'x': _w((lambda *s: torch.randn(*s, dtype=torch.bfloat16) * 0.05)(B, S, Dm)), 'mem0': _w((lambda *s: torch.randn(*s, dtype=torch.bfloat16) * 0.4)(B, M, Dm)), 'Wq': _w((lambda *s: torch.randn(*s, dtype=torch.bfloat16) * 3.2)(Dm, H, Dh) * Dm ** (-0.5)), 'Wk': _w((lambda *s: torch.randn(*s, dtype=torch.bfloat16) * 3.2)(Dm, H, Dh) * Dm ** (-0.5)), 'Wv': _w((lambda *s: torch.randn(*s, dtype=torch.bfloat16) * 0.4)(Dm, H, Dh) * Dm ** (-0.5)), 'Wo': _w((lambda *s: torch.randn(*s, dtype=torch.bfloat16) * 0.4)(H, Dh, Dm) * (H * Dh) ** (-0.5)), 'seg_len': seg}
    _A_in = _A_setup()

    def _B_setup():
        B, S, D, Dff = (1, 2048, 1024, 3584)
        return {'x': _w((lambda *s: torch.randn(*s, dtype=torch.bfloat16) * 0.05)(B, S, D)), 'w1': _w((lambda *s: torch.randn(*s, dtype=torch.bfloat16) * 0.05)(D, Dff)), 'w2': _w((lambda *s: torch.randn(*s, dtype=torch.bfloat16) * 0.05)(Dff, D))}
    _B_in = _B_setup()
    return {'A_x': _A_in['x'], 'A_mem0': _A_in['mem0'], 'A_Wq': _A_in['Wq'], 'A_Wk': _A_in['Wk'], 'A_Wv': _A_in['Wv'], 'A_Wo': _A_in['Wo'], 'A_seg_len': _A_in['seg_len'], 'B_x': _B_in['x'], 'B_w1': _B_in['w1'], 'B_w2': _B_in['w2'], 'c': _w((lambda *s: torch.randn(*s, dtype=torch.bfloat16) * 0.1)(1, 1024) * 8.0), 'w_mod': _w((lambda *s: torch.randn(*s, dtype=torch.bfloat16) * 0.1)(1024, 6 * 1024) * 1024 ** (-0.5) * 8.0)}

def reference(A_x, A_mem0, A_Wq, A_Wk, A_Wv, A_Wo, A_seg_len, B_x, B_w1, B_w2, c, w_mod):

    def _A_ref(x, mem0, Wq, Wk, Wv, Wo, seg_len):
        B, S, Dm = x.shape
        H, Dh = (Wq.shape[1], Wq.shape[2])
        M = mem0.shape[1]
        scale = Dh ** (-0.5)
        n_seg = S // seg_len
        L = M + seg_len
        idx = torch.arange(L)
        mask = (idx[:, None] < M) | (idx[:, None] >= idx[None, :])
        mem = mem0
        outs = []
        for s in range(n_seg):
            xs = x[:, s * seg_len:(s + 1) * seg_len, :].clone()
            h = torch.concatenate([mem, xs], axis=1)
            q = torch.einsum('btd,dhe->bhte', h, Wq)
            k = torch.einsum('btd,dhe->bhte', h, Wk)
            v = torch.einsum('btd,dhe->bhte', h, Wv)
            scores = torch.einsum('bhqe,bhke->bhqk', q, k) * scale
            scores = torch.where(mask[None, None], scores, -1000000000.0)
            p = _softmax(scores, axis=-1)
            o = torch.einsum('bhqk,bhke->bhqe', p, v)
            o = torch.einsum('bhte,hed->btd', o, Wo)
            mem = o[:, :M, :].clone()
            outs.append(o[:, M:, :])
        return torch.concatenate(outs, axis=1)

    def _B_ref(x, w1, w2):
        h = torch.einsum('bsd,df->bsf', x, w1)
        zero = torch.zeros_like(h)
        h = torch.maximum(h, zero)
        return torch.einsum('bsf,fd->bsd', h, w2)
    x = A_x
    mod = (_silu(c) @ w_mod).reshape(c.shape[0], 6, 1, -1)
    sa, ca, ga, sb, cb, gb = (mod[:, 0].clone(), mod[:, 1].clone(), mod[:, 2].clone(), mod[:, 3].clone(), mod[:, 4].clone(), mod[:, 5].clone())
    h = _layernorm(x, axis=-1) * (1 + ca) + sa
    x = x + ga * _A_ref(h, A_mem0, A_Wq, A_Wk, A_Wv, A_Wo, A_seg_len)
    h = _layernorm(x, axis=-1) * (1 + cb) + sb
    x = x + gb * _B_ref(h, B_w1, B_w2)
    return x
```

```python
NAME = 'adaLN_cond__memory_aug_recurrent_mem_tr__dense_activation_relu__prompt'

class Asm:
    def __init__(self):
        self.lines = []
        self.uid = 0
    def __call__(self, s=''):
        for l in s.split('\n'):
            l = l.strip()
            if l:
                self.lines.append(l)
    def label(self, base):
        self.uid += 1
        return f'.L{base}_{self.uid}'
    def text(self):
        return '\n'.join(self.lines) + '\n'

def vr(b, n=1, p='v'):
    return f'{p}{b}' if n == 1 else f'{p}[{b}:{b+n-1}]'
def ar(b, n=1): return vr(b, n, 'a')
def sr(b, n=1): return vr(b, n, 's')

def srd(a, d, base, nbytes):
    a(f's_mov_b32 s{d}, s{base}')
    a(f's_mov_b32 s{d+1}, s{base+1}')
    a(f's_mov_b32 s{d+2}, {nbytes:#x}')
    a(f's_mov_b32 s{d+3}, 0x00020000')

def srd_off(a, d, base, off, nbytes):
    a(f's_add_u32 s{d}, s{base}, {off:#x}')
    a(f's_addc_u32 s{d+1}, s{base+1}, 0')
    a(f's_mov_b32 s{d+2}, {nbytes:#x}')
    a(f's_mov_b32 s{d+3}, 0x00020000')

def kernel_begin(a, label):
    a(f'.text\n.globl {label}\n.p2align 8\n.type {label},@function\n{label}:')

def kernel_desc(a, label, vgpr, accum, sgpr=102):
    a(f'''.section .rodata,"a"
    .p2align 6
    .amdhsa_kernel {label}
    .amdhsa_next_free_vgpr {vgpr}
    .amdhsa_next_free_sgpr {sgpr}
    .amdhsa_accum_offset {accum}
    .amdhsa_group_segment_fixed_size 0
    .amdhsa_kernarg_size 120
    .amdhsa_user_sgpr_count 2
    .amdhsa_user_sgpr_kernarg_segment_ptr 1
    .amdhsa_system_sgpr_workgroup_id_x 1
    .end_amdhsa_kernel''')

HEADER_COMMENT = '''; Kernarg layout (120 bytes, ptrs only, base s[0:1]):
'''
def header(launches):
    s = HEADER_COMMENT
    for (k, g, b, lds) in launches:
        s += f'; @launch kernel={k} grid=({g},1,1) block=({b},1,1) lds={lds}\n'
    s += '.amdgcn_target "amdgcn-amd-amdhsa--gfx950"\n'
    return s
```

```python
from asmlib import *

S_ASRD, S_WSRD = 40, 44
S_AOFF, S_WOFF, S_CNT, S_STG_RD, S_STG_WR, S_T0, S_WSTEP8, S_WSTEP, S_LDSW, S_T1, S_NREM = range(48, 59)

TIMING = False
EXP = {'split': 4}
class Gemm:
    def __init__(self, TM, TN, S, vtype=False, vbase=0):
        self.TM, self.TN, self.S, self.vtype = TM, TN, S, vtype
        self.mt, self.nt = TM // 64, TN // 64
        self.RB = TN * 2
        self.abytes = TM * 64
        self.wbytes = 32 * self.RB
        self.stage = self.abytes + self.wbytes
        self.lds = self.stage * S
        self.na = self.abytes // 4096
        self.nw = self.wbytes // 4096
        self.nd = self.na + self.nw
        v = vbase
        self.vA = [v, v + 4 * self.mt]; v += 8 * self.mt
        self.vW = [v, v + 4 * self.nt]; v += 8 * self.nt
        self.vAr0 = v; v += 1
        self.vWr0 = v; v += self.nt
        self.vAr = v; v += 1
        self.vWr = v; v += self.nt
        self.vAd = v; v += 1
        self.vWd = v; v += 1
        self.vT = v; v += 4
        self.vend = v
    def split(self):
        return self.na if EXP.get('split') else 0
    def acc(self, i, j): return (i * self.nt + j) * 16

    def setup(self, a, vlane, swave, KB, Nbytes):
        mt, nt, RB = self.mt, self.nt, self.RB
        t0, t1, t2 = self.vT, self.vT + 1, self.vT + 2
        a(f's_lshr_b32 s{S_T0}, s{swave}, 1\ns_mul_i32 s{S_T0}, s{S_T0}, {mt*2048}')
        a(f'v_lshlrev_b32 v{self.vAr0}, 4, v{vlane}\nv_add_u32 v{self.vAr0}, s{S_T0}, v{self.vAr0}')
        a(f'v_lshrrev_b32 v{t0}, 2, v{vlane}\nv_and_b32 v{t0}, 3, v{t0}')
        a(f'v_lshrrev_b32 v{t1}, 5, v{vlane}\nv_lshlrev_b32 v{t1}, 2, v{t1}\nv_add_u32 v{t1}, v{t1}, v{t0}')
        a(f'v_mul_u32_u24 v{t1}, {RB}, v{t1}')
        a(f'v_and_b32 v{t2}, 3, v{vlane}\nv_lshlrev_b32 v{t2}, 3, v{t2}\nv_add_u32 v{t1}, v{t1}, v{t2}')
        a(f'v_and_b32 v{t2}, 16, v{vlane}\nv_lshlrev_b32 v{t2}, 1, v{t2}\nv_add_u32 v{t1}, v{t1}, v{t2}')
        a(f'v_add_u32 v{t1}, {self.abytes}, v{t1}')
        if RB == 128: a(f'v_lshrrev_b32 v{t0}, 1, v{t0}')
        a(f's_and_b32 s{S_T0}, s{swave}, 1\ns_mul_i32 s{S_T0}, s{S_T0}, {nt}')
        for j in range(nt):
            a(f's_add_u32 s{S_T1}, s{S_T0}, {j}\nv_xor_b32 v{t2}, s{S_T1}, v{t0}\nv_lshlrev_b32 v{t2}, 6, v{t2}')
            a(f'v_add_u32 v{self.vWr0+j}, v{t1}, v{t2}')
        na = self.na
        if na >= 2:
            a(f's_mul_i32 s{S_T0}, s{swave}, {(na//2)*KB*1024}')
        else:
            a(f's_lshr_b32 s{S_T0}, s{swave}, 1\ns_mul_i32 s{S_T0}, s{S_T0}, {KB*1024}')
            a(f's_and_b32 s{S_T1}, s{swave}, 1\ns_lshl_b32 s{S_T1}, s{S_T1}, 10\ns_add_u32 s{S_T0}, s{S_T0}, s{S_T1}')
        a(f'v_lshlrev_b32 v{self.vAd}, 4, v{vlane}\nv_add_u32 v{self.vAd}, s{S_T0}, v{self.vAd}')
        rpi = 1024 // RB; lpr = RB // 16
        sh = lpr.bit_length() - 1
        a(f'v_lshrrev_b32 v{t0}, {sh}, v{vlane}')
        a(f's_mul_i32 s{S_T0}, s{swave}, {rpi}\nv_add_u32 v{t0}, s{S_T0}, v{t0}')
        a(f'v_and_b32 v{t1}, 3, v{t0}')
        if RB == 128: a(f'v_lshrrev_b32 v{t1}, 1, v{t1}')
        a(f'v_and_b32 v{t2}, {lpr-1}, v{vlane}\nv_lshrrev_b32 v{t2}, 2, v{t2}\nv_xor_b32 v{t1}, v{t1}, v{t2}\nv_lshlrev_b32 v{t1}, 6, v{t1}')
        a(f'v_and_b32 v{t2}, 3, v{vlane}\nv_lshlrev_b32 v{t2}, 4, v{t2}\nv_add_u32 v{t1}, v{t1}, v{t2}')
        a(f's_mov_b32 s{S_T0}, {Nbytes}\nv_mul_lo_u32 v{t0}, v{t0}, s{S_T0}\nv_add_u32 v{self.vWd}, v{t0}, v{t1}')
        a(f's_mov_b32 s{S_WSTEP8}, {4*rpi*Nbytes}\ns_mov_b32 s{S_WSTEP}, {32*Nbytes}')
        a(f's_mul_i32 s{S_LDSW}, s{swave}, {1024*self.na}')
        self.KB = KB; self.swave = swave

    def dma_ops(self):
        ops = []
        KB = self.KB
        for q in range(self.na):
            if q % 2 == 0 or self.na < 2:
                g = f's_add_u32 m0, s{S_STG_WR}, s{S_LDSW}' if q == 0 else f's_add_u32 m0, m0, 2048'
                if q == 0: so = f's{S_AOFF}'; g += '\ns_nop 0'
                else:
                    g += f'\ns_add_u32 s{S_T1}, s{S_AOFF}, {(q//2)*KB*1024}'; so = f's{S_T1}'
                ops.append(g + f'\nbuffer_load_dwordx4 v{self.vAd}, s[{S_ASRD}:{S_ASRD+3}], {so} offen lds')
                last = so
            else:
                ops.append(f'buffer_load_dwordx4 v{self.vAd}, s[{S_ASRD}:{S_ASRD+3}], {last} offen offset:1024 lds')
        for j in range(self.nw):
            if j == 0:
                g = f's_lshl_b32 s{S_T0}, s{self.swave}, 10\ns_add_u32 s{S_T0}, s{S_T0}, s{S_STG_WR}\ns_add_u32 m0, s{S_T0}, {self.abytes}\ns_mov_b32 s{S_T1}, s{S_WOFF}'
            else:
                g = f's_add_u32 m0, m0, 4096\ns_add_u32 s{S_T1}, s{S_T1}, s{S_WSTEP8}'
            ops.append(g + f'\nbuffer_load_dwordx4 v{self.vWd}, s[{S_WSRD}:{S_WSRD+3}], s{S_T1} offen lds')
        ops.append(f's_add_u32 s{S_AOFF}, s{S_AOFF}, 2048\ns_add_u32 s{S_WOFF}, s{S_WOFF}, s{S_WSTEP}\n'
                   f's_add_u32 s{S_STG_WR}, s{S_STG_WR}, {self.stage}\ns_cmp_eq_u32 s{S_STG_WR}, {self.lds}\n'
                   f's_cselect_b32 s{S_STG_WR}, 0, s{S_STG_WR}\n'
                   f's_sub_u32 s{S_NREM}, s{S_NREM}, 1\ns_cmp_gt_i32 s{S_NREM}, 0\n'
                   f's_cselect_b32 s{S_ASRD+2}, s{S_ASRD+2}, 0\ns_cselect_b32 s{S_WSRD+2}, s{S_WSRD+2}, 0')
        return ops

    def read_ops(self, fs, kb):
        ops = []
        aops = [f'ds_read_b128 {vr(self.vA[fs]+4*i,4)}, v{self.vAr} offset:{(i*2+kb)*1024}' for i in range(self.mt)]
        wops = []
        for j in range(self.nt):
            for h in range(2):
                wops.append(f'ds_read_b64_tr_b16 {vr(self.vW[fs]+4*j+2*h,2)}, v{self.vWr+j} offset:{(kb*16+h*8)*self.RB}')
        ops.append(aops[0]); ops += wops[:2]
        rest_a, rest_w = aops[1:], wops[2:]
        ops += rest_w + rest_a
        return ops

    def addr_ops(self):
        ops = [f's_add_u32 s{S_STG_RD}, s{S_STG_RD}, {self.stage}\ns_cmp_eq_u32 s{S_STG_RD}, {self.lds}\n'
               f's_cselect_b32 s{S_STG_RD}, 0, s{S_STG_RD}\nv_add_u32 v{self.vAr}, s{S_STG_RD}, v{self.vAr0}']
        for j in range(self.nt):
            ops.append(f'v_add_u32 v{self.vWr+j}, s{S_STG_RD}, v{self.vWr0+j}')
        return ops

    def mfma(self, fs, i, j, zero=False):
        A, W = vr(self.vA[fs] + 4*i, 4), vr(self.vW[fs] + 4*j, 4)
        c = ar(self.acc(i, j), 16)
        s0, s1 = (A, W) if self.vtype else (W, A)
        return f'v_mfma_f32_32x32x16_bf16 {c}, {s0}, {s1}, {"0" if zero else c}'

    def prologue(self, a):
        a(f's_mov_b32 s{S_STG_WR}, 0\ns_mov_b32 s{S_NREM}, s{S_CNT}')
        h = self.split()
        for c in range(self.S):
            ops = self.dma_ops()
            if h and c == self.S - 1: ops = ops[:h]
            for o in ops: a(o)

    def main(self, a):
        nd, S = self.nd, self.S
        order = [(i, j) for i in range(self.mt) for j in range(self.nt)]
        nm = len(order)
        a(f's_mov_b32 s{S_STG_RD}, 0\nv_mov_b32 v{self.vAr}, v{self.vAr0}')
        for j in range(self.nt): a(f'v_mov_b32 v{self.vWr+j}, v{self.vWr0+j}')
        for r in range(16 * nm): a(f'v_accvgpr_write_b32 a{r}, 0')
        h0 = self.split()
        a(f's_waitcnt vmcnt({(S-2)*nd + (h0 if h0 else nd)})\ns_barrier')
        if TIMING: a('s_memtime s[62:63]')
        for o in self.read_ops(0, 0): a(o)
        loop = a.label('gl')
        a(f'{loop}:')
        def phase(fs, early, late, pre):
            early = list(early); late = list(late)
            gaps = [[] for _ in range(nm)]
            g = 0
            pe = max(2, -(-len(early) // max(nm - 1, 1)))
            while early:
                for _ in range(pe):
                    if early: gaps[min(g, nm-1)].append(early.pop(0))
                g += 1
            g0 = min(g, nm - 1) if EXP.get('late_after', True) else 0
            n = len(late)
            for k, o in enumerate(late):
                gaps[min(nm - 1, g0 + (k * (nm - g0)) // max(n, 1))].append(o)
            a('s_waitcnt lgkmcnt(0)')
            for n, (i, j) in enumerate(order):
                a(self.mfma(fs, i, j))
                if n == 0 and pre: a(pre)
                for o in gaps[n]: a(o)
        dm = self.dma_ops()
        if EXP.get('nodma'): dm = dm[-1:]
        h = self.split()
        bar = f's_waitcnt vmcnt({(S-2)*nd})\ns_barrier'
        if EXP.get('nobar'): bar = None
        phase(0, self.read_ops(1, 1), self.addr_ops() + (dm[h:] if h else []), None)
        phase(1, self.read_ops(0, 0), dm[:h] if h else dm, bar)
        a(f's_sub_u32 s{S_CNT}, s{S_CNT}, 1\ns_cmp_lg_u32 s{S_CNT}, 0\ns_cbranch_scc1 {loop}')
        if TIMING: a('s_memtime s[64:65]')
        a('s_waitcnt vmcnt(0) lgkmcnt(0)\ns_nop 15')

    def epi_bf16(self, a, osrd, svoff, vaddr, tbstride, relu=False):
        t = self.vA[0]
        n = 0
        for i in range(self.mt):
            a(f's_add_u32 s{S_T1}, s{svoff}, {i*tbstride}')
            for j in range(self.nt):
                for h in range(2):
                    b = t + (n % 2) * 12; n += 1
                    for r in range(8): a(f'v_accvgpr_read_b32 v{b+r}, a{self.acc(i,j)+8*h+r}')
                    if relu:
                        for r in range(8): a(f'v_max_f32 v{b+r}, 0, v{b+r}')
                    for r in range(4): a(f'v_cvt_pk_bf16_f32 v{b+8+r}, v{b+2*r}, v{b+2*r+1}')
                    off = (j*2+h) * 1024
                    if off >= 4096:
                        if off % 4096 == 0: a(f's_add_u32 s{S_T1}, s{S_T1}, 4096')
                        off %= 4096
                    a(f'buffer_store_dwordx4 {vr(b+8,4)}, v{vaddr}, s[{osrd}:{osrd+3}], s{S_T1} offen offset:{off}')

    def epi_res(self, a, xsrd, msrd, osrd, svoff, vaddr, smod, vmod, R0, out_rowmajor=False, sout=None, vout=None):
        nb = self.nt * 2
        G = R0; X = G + 8 * nb; T = X + 4 * nb * self.mt
        for b in range(nb):
            for h in range(2):
                a(f'buffer_load_dwordx4 {vr(G+8*b+4*h,4)}, v{vmod}, s[{msrd}:{msrd+3}], s{smod} offen offset:{64*b+16*h}')
        for i in range(self.mt):
            a(f's_add_u32 s{S_T1}, s{svoff}, {i*65536}')
            for b in range(nb):
                if b == 4: a(f's_add_u32 s{S_T1}, s{S_T1}, 4096')
                a(f'buffer_load_dwordx4 {vr(X+4*(i*nb+b),4)}, v{vaddr}, s[{xsrd}:{xsrd+3}], s{S_T1} offen offset:{(b%4)*1024}')
        n = 0; tot = self.mt * nb
        for i in range(self.mt):
            if out_rowmajor: a(f's_add_u32 s{S_T1}, s{sout}, {i*65536}')
            else: a(f's_add_u32 s{S_T1}, s{svoff}, {i*65536}')
            for b in range(nb):
                j, h = b // 2, b % 2
                x = X + 4 * (i*nb + b)
                for r in range(8): a(f'v_accvgpr_read_b32 v{T+r}, a{self.acc(i,j)+8*h+r}')
                for r in range(4): a(f'v_cvt_pk_bf16_f32 v{T+8+r}, v{T+2*r}, v{T+2*r+1}')
                for r in range(4): a(f'v_lshlrev_b32 v{T+2*r}, 16, v{T+8+r}\nv_and_b32 v{T+2*r+1}, 0xffff0000, v{T+8+r}')
                if n == 0: a(f's_waitcnt vmcnt({tot})')
                for r in range(8): a(f'v_mul_f32 v{T+r}, v{T+r}, v{G+8*b+r}')
                for r in range(4): a(f'v_cvt_pk_bf16_f32 v{T+8+r}, v{T+2*r}, v{T+2*r+1}')
                a(f's_waitcnt vmcnt({tot-1})')
                for r in range(4):
                    a(f'v_lshlrev_b32 v{T+2*r}, 16, v{T+8+r}\nv_and_b32 v{T+2*r+1}, 0xffff0000, v{T+8+r}')
                    a(f'v_lshlrev_b32 v{T+8+r}, 16, v{x+r}\nv_and_b32 v{x+r}, 0xffff0000, v{x+r}')
                for r in range(4): a(f'v_add_f32 v{T+2*r}, v{T+2*r}, v{T+8+r}\nv_add_f32 v{T+2*r+1}, v{T+2*r+1}, v{x+r}')
                for r in range(4): a(f'v_cvt_pk_bf16_f32 v{x+r}, v{T+2*r}, v{T+2*r+1}')
                if out_rowmajor:
                    a(f'v_permlane32_swap_b32 v{x}, v{x+2}\nv_permlane32_swap_b32 v{x+1}, v{x+3}')
                    a(f'buffer_store_dwordx4 {vr(x,4)}, v{vout}, s[{osrd}:{osrd+3}], s{S_T1} offen offset:{32*b}')
                else:
                    if b == 4: a(f's_add_u32 s{S_T1}, s{S_T1}, 4096')
                    a(f'buffer_store_dwordx4 {vr(x,4)}, v{vaddr}, s[{osrd}:{osrd+3}], s{S_T1} offen offset:{(b%4)*1024}')
                n += 1
        return T + 12
```

```python
import re
_reg = re.compile(r'\b([vas])(\d+)\b|\b([vas])\[(\d+):(\d+)\]|\b(vcc|m0|exec)\b')
def regs(s):
    out = set()
    for m in _reg.finditer(s):
        if m.group(1): out.add((m.group(1), int(m.group(2))))
        elif m.group(3): out.update((m.group(3), i) for i in range(int(m.group(4)), int(m.group(5)) + 1))
        else: out.add(('x', m.group(6)))
    return out
TRANS = ('v_exp_', 'v_log_', 'v_rcp_', 'v_rsq_', 'v_sqrt_', 'v_sin_', 'v_cos_')
class I:
    def __init__(s, line):
        s.line = line; t = line.split(';')[0].strip()
        s.label = t.endswith(':'); s.dir = t.startswith('.') and not s.label
        s.op = t.split()[0] if t and not s.label and not s.dir else ''
        rest = t[len(s.op):]
        ops = [o.strip() for o in rest.split(',')] if s.op else []
        s.ws = 0 if not s.op else 1
        if s.op == 's_nop': s.ws = int(ops[0], 0) + 1
        s.W = set(); s.R = set(); s.kind = ''; s.C = set(); s.AB = set(); s.passes = 0
        s.dpp = s.perm = s.rl = s.trans = s.wide = s.ldsdma = False; s.data = set(); s.dot = False
        op = s.op
        if op.startswith(('v_mfma', 'v_smfmac')):
            s.kind = 'mfma'; s.W = regs(ops[0]); s.AB = regs(ops[1]) | regs(ops[2])
            if op.startswith('v_smfmac'): s.C = set(s.W); s.AB |= regs(ops[3])
            else: s.C = regs(ops[3])
            s.passes = 8 if '32x32' in op else 4
            s.R = s.AB | s.C
        elif op.startswith('v_'):
            s.kind = 'valu'
            s.W = regs(ops[0]); s.R = set().union(*[regs(o) for o in ops[1:]]) if len(ops) > 1 else set()
            if op.startswith('v_permlane') : s.perm = True; s.W |= s.R; s.R = set(s.W)
            if op.startswith(('v_fmac', 'v_dot2c', 'v_pk_fmac', 'v_mac', 'v_writelane')): s.R |= s.W
            if op.startswith('v_dot'): s.dot = True
            if 'row_' in t or 'quad_perm' in t or '_dpp' in op: s.dpp = True; s.R |= s.W
            if op.startswith(('v_readlane', 'v_readfirstlane')): s.rl = True
            if op.startswith(TRANS): s.trans = True
            if op.startswith(('v_add_co', 'v_sub_co', 'v_addc_co', 'v_subb_co')): s.W |= regs(ops[1])
            if op.startswith('v_cndmask') and len(ops) == 3: s.R.add(('x', 'vcc'))
        elif op.startswith(('buffer_', 'global_')):
            s.kind = 'vmem'
            allr = set().union(*[regs(o) for o in ops])
            if re.search(r'\blds\b', t): s.ldsdma = True; s.R = allr
            elif '_load' in op: s.W = regs(ops[0]); s.R = set().union(*[regs(o) for o in ops[1:]])
            else:
                s.R = allr
                d = regs(ops[0]) if op.startswith('buffer_') else regs(ops[1])
                if 'x3' in op or 'x4' in op: s.wide = True; s.data = d
                if 'atomic' in op and re.search(r'\bsc0\b', t): s.W = regs(ops[0])
        elif op.startswith('ds_'):
            s.kind = 'ds'
            if op.startswith('ds_read') or '_rtn' in op or 'permute' in op or 'swizzle' in op:
                s.W = regs(ops[0]); s.R = set().union(*[regs(o) for o in ops[1:]])
            else: s.R = set().union(*[regs(o) for o in ops])
        elif op.startswith('s_'):
            s.kind = 'salu'
            if ops and not op.startswith(('s_cmp', 's_waitcnt', 's_nop', 's_cbranch', 's_branch', 's_barrier', 's_setprio', 's_sleep', 's_endpgm', 's_bitcmp')):
                s.W = regs(ops[0]); s.R = set().union(*[regs(o) for o in ops[1:]]) if len(ops) > 1 else set()
            s.target = ops[0] if op.startswith(('s_cbranch', 's_branch')) else None

def isv(r): return r[0] in 'va'
def need(p, c):
    n = 0
    if p.kind == 'valu':
        wv = {r for r in p.W if isv(r)}; wsg = p.W - wv
        if wv & c.R:
            if c.kind == 'mfma' or c.dpp or c.perm: n = max(n, 2)
            if c.rl: n = max(n, 1)
            if p.trans and c.kind == 'valu' and not c.trans: n = max(n, 1)
            if p.trans and c.kind in ('vmem', 'ds'): n = max(n, 1)
        if p.dot and (wv & (c.R | c.W)) and not (c.op == p.op and not (wv & (c.R - c.W))): n = max(n, 3)
        if wsg & c.R:
            if c.kind == 'valu': n = max(n, 4 if c.op.startswith(('v_readlane', 'v_writelane')) else 2)
            if c.kind == 'vmem': n = max(n, 5)
        if ('x', 'exec') in p.W: n = max(n, 5)
    if p.kind == 'mfma':
        big = p.passes == 8
        if c.kind == 'mfma':
            if p.W & c.AB: n = max(n, 12 if big else 8)
            if p.W & c.C and not (p.W == c.C and p.passes == c.passes): n = max(n, 10 if big else 6)
            if p.W & c.W and not (p.W & c.C): n = max(n, 10 if big else 6)
        elif c.kind in ('valu', 'vmem', 'ds'):
            if p.W & (c.R | c.W): n = max(n, 12 if big else 8)
            if c.kind == 'valu' and p.C & c.W: n = max(n, 7 if big else 3)
    if p.wide and p.data & c.W: n = max(n, 2)
    if p.kind == 'salu' and ('x', 'm0') in p.W and c.ldsdma: n = max(n, 1)
    return n

def fix(text, window=14):
    ins = [I(l) for l in text.split('\n')]
    added = 0
    def deficit(prev, c):
        d = 0; ws = 0
        for p in reversed(prev):
            if ws >= window: break
            if p.op:
                d = max(d, need(p, c) - ws)
            ws += p.ws
        return d
    changed = True
    while changed:
        changed = False
        out = []
        for c in ins:
            if c.op and c.op != 's_nop':
                d = deficit(out[-40:], c)
                if d > 0: out.append(I(f's_nop {d-1}')); added += 1
            out.append(c)
        ins = out
        lab = {c.line.strip()[:-1]: i for i, c in enumerate(ins) if c.label}
        for i, c in enumerate(ins):
            if c.kind == 'salu' and c.target in lab:
                j = lab[c.target]; prev = ins[max(0, i-40):i+1]; ws = 0; k = j + 1
                while k < len(ins) and ws < window:
                    x = ins[k]
                    if x.op:
                        d = deficit(prev, x) if x.op != 's_nop' else 0
                        if d > 0:
                            ins.insert(j + 1, I(f's_nop {d-1}')); added += 1; changed = True; break
                        if x.op in ('s_branch', 's_endpgm'): break
                    prev = prev + [x]; ws += x.ws; k += 1
                if changed: break
    return '\n'.join(c.line for c in ins), added
```

```python
from asmlib import *
from layout import *
from k_small import SCALE, LOG2E, unpack

C_XCD, C_FULL, C_MODE, C_T2 = 0, 1024, 1152, 1280
SLOT = 512 * 1024
R_X, R_O, R_S, R_P = 0, 65536, 131072, 393216
S_STRIDE = 1280
L_ACC, L_M, L_KX, L_VX, L_ROLE, L_STG = 0, 13824, 18432, 20480, 22528, 23552
MS = 4608
CHAIN_LDS = L_STG + 4 * 32768
OOB = 0x40000000
sRING, sWS, sW = 8, 12, 16
sX, sC, sCU, sSTEP, sSLOT, sNEXT, sRST, sBUD, sSEG, sKM, sT, sT2, sMODE = range(20, 33)
sTS = 36
TIMING = False
NSTEP = 64
POLL_BUDGET = 400000

def stamp(a, i):
    if TIMING: a(f's_memtime s[{sTS+2*i}:{sTS+2*i+1}]')

def roles(a, end, ngrid):
    srd_off(a, sW, 4, CTL, 65536)
    a(f's_getreg_b32 s{sX}, hwreg(HW_REG_XCC_ID, 0, 4)\ns_and_b32 s{sX}, s{sX}, 7')
    skip = a.label('rs'); nf = a.label('nf')
    a(f's_cmp_lg_u32 s3, 0\ns_cbranch_scc1 {skip}')
    a(f's_lshl_b32 s{sT}, s{sX}, 7\nv_mov_b32 v2, 0\nv_mov_b32 v4, 1\ns_mov_b64 exec, 1')
    a(f'buffer_atomic_add v4, v2, s[{sW}:{sW+3}], s{sT} offen sc0\ns_waitcnt vmcnt(0)')
    a(f'v_readfirstlane_b32 s{sC}, v4\nds_write_b32 v2, v4 offset:{L_ROLE}')
    a(f's_cmp_lg_u32 s{sC}, 31\ns_cbranch_scc1 {nf}\ns_cmp_ge_u32 s{sX}, 4\ns_cbranch_scc1 {nf}')
    a(f'v_mov_b32 v4, 1\nbuffer_atomic_add v4, v2, s[{sW}:{sW+3}], 0 offen offset:{C_FULL} sc0 sc1\ns_waitcnt vmcnt(0)')
    a(f'v_readfirstlane_b32 s{sT}, v4\ns_cmp_lg_u32 s{sT}, 3\ns_cbranch_scc1 {nf}')
    a(f'v_mov_b32 v4, 1\nv_mov_b32 v5, 0\nbuffer_atomic_cmpswap v[4:5], v2, s[{sW}:{sW+3}], 0 offen offset:{C_MODE} sc1')
    a(f'{nf}:\ns_mov_b64 exec, -1\n{skip}:')
    a(f's_waitcnt lgkmcnt(0)\ns_barrier\nv_mov_b32 v2, 0\nds_read_b32 v4, v2 offset:{L_ROLE}\ns_waitcnt lgkmcnt(0)\nv_readfirstlane_b32 s{sC}, v4')
    a(f's_mov_b32 s{sMODE}, 0')

def wait_mode(a, load, end):
    go = a.label('go'); skip = a.label('ms'); lp = a.label('mp'); got = a.label('mg'); fast = a.label('mf')
    a(f's_cmp_lg_u32 s{sMODE}, 0\ns_cbranch_scc1 {go}')
    srd_off(a, sW, 4, CTL, 65536)
    a(f's_barrier\ns_cmp_lg_u32 s3, 0\ns_cbranch_scc1 {skip}')
    a(f's_mov_b32 s{sT}, 4000\nv_mov_b32 v2, 0\ns_mov_b64 exec, 1\n{lp}:')
    a(f'buffer_load_dword v4, v2, s[{sW}:{sW+3}], 0 offen offset:{C_MODE} sc1\ns_waitcnt vmcnt(0)')
    a(f'v_readfirstlane_b32 s{sT2}, v4\ns_cmp_lg_u32 s{sT2}, 0\ns_cbranch_scc1 {got}')
    a(f's_sub_u32 s{sT}, s{sT}, 1\ns_cmp_lg_u32 s{sT}, 0\ns_cbranch_scc1 {lp}')
    a(f'v_mov_b32 v4, 2\nv_mov_b32 v5, 0\nbuffer_atomic_cmpswap v[4:5], v2, s[{sW}:{sW+3}], 0 offen offset:{C_MODE} sc0 sc1\ns_waitcnt vmcnt(0)')
    a(f'v_readfirstlane_b32 s{sT2}, v4\ns_cmp_eq_u32 s{sT2}, 0\ns_cselect_b32 s{sT2}, 2, s{sT2}')
    a(f'{got}:\nv_mov_b32 v4, s{sT2}\nv_mov_b32 v5, 1\ns_cmp_eq_u32 s{sT2}, 1\ns_cbranch_scc1 {fast}')
    a(f'buffer_atomic_add v5, v2, s[{sW}:{sW+3}], 0 offen offset:{C_T2} sc0 sc1\ns_waitcnt vmcnt(0)')
    a(f'{fast}:\nds_write_b64 v2, v[4:5] offset:{L_ROLE+8}\ns_mov_b64 exec, -1\n{skip}:')
    a(f's_waitcnt lgkmcnt(0)\ns_barrier\nv_mov_b32 v2, 0\nds_read_b64 v[4:5], v2 offset:{L_ROLE+8}\ns_waitcnt lgkmcnt(0)')
    a(f'v_readfirstlane_b32 s{sMODE}, v4\nv_readfirstlane_b32 s{sT}, v5\ns_cmp_eq_u32 s{sMODE}, 2')
    nat = a.label('nat')
    a(f's_cbranch_scc0 {nat}')
    a(f's_cmp_ge_u32 s{sT}, 128\ns_cbranch_scc1 {end}\ns_lshr_b32 s{sX}, s{sT}, 5\ns_and_b32 s{sC}, s{sT}, 31\ns_branch {load}')
    a(f'{nat}:\ns_cmp_ge_u32 s{sX}, 4\ns_cbranch_scc1 {end}\ns_cmp_ge_u32 s{sC}, 32\ns_cbranch_scc1 {end}\n{go}:')

def load_weights(a):
    a(f's_lshl_b32 s{sCU}, s{sX}, 5\ns_add_u32 s{sCU}, s{sCU}, s{sC}')
    a('s_load_dwordx4 s[60:63], s[0:1], 16\ns_load_dwordx4 s[64:67], s[0:1], 32')
    a('v_lshrrev_b32 v4, 2, v0\nv_and_b32 v5, 3, v0\nv_lshlrev_b32 v5, 4, v5\nv_lshl_add_u32 v6, v4, 13, v5\nv_lshl_add_u32 v7, v4, 11, v5')
    a('v_bfe_u32 v8, v0, 3, 1\nv_lshlrev_b32 v8, 5, v8\nv_bfe_u32 v9, v0, 2, 1\nv_add_u32 v8, v8, v9')
    a('v_bfe_u32 v9, v0, 5, 1\nv_bfe_u32 v10, v0, 4, 1')
    a('v_lshl_add_u32 v11, v9, 3, v8\nv_lshl_add_u32 v11, v10, 2, v11\nv_lshl_add_u32 v12, v10, 4, v8\nv_lshl_add_u32 v12, v9, 2, v12')
    a(f's_lshl_b32 s{sT2}, s3, 15\ns_add_u32 s{sT2}, s{sT2}, {L_STG}')
    a(f'v_and_b32 v9, 3, v0\nv_lshlrev_b32 v9, 3, v9\nv_add_u32 v9, s{sT2}, v9\nv_lshl_add_u32 v11, v11, 6, v9\nv_lshl_add_u32 v12, v12, 6, v9')
    a('s_waitcnt lgkmcnt(0)')
    def issue(m):
        srd(a, sW, 60 + 2*m, 8*MB)
        if m < 3: a(f's_lshl_b32 s{sT}, s3, 21\ns_lshl_b32 s33, s{sCU}, 6\ns_add_u32 s{sT}, s{sT}, s33'); step, v = 16*8192, 6
        else: a(f's_lshl_b32 s{sT}, s{sX}, 21\ns_lshl_b32 s33, s3, 19\ns_add_u32 s{sT}, s{sT}, s33\ns_lshl_b32 s33, s{sC}, 6\ns_add_u32 s{sT}, s{sT}, s33'); step, v = 16*2048, 7
        a(f's_add_u32 m0, s{sT2}, {(m%2)*16384}')
        for i in range(16):
            a(f'buffer_load_dwordx4 v{v}, s[{sW}:{sW+3}], s{sT} offen lds')
            if i < 15: a(f's_add_u32 m0, m0, 1024\ns_add_u32 s{sT}, s{sT}, {step}')
    def read(m):
        for t in range(2):
            for p in range(4):
                for u in range(4):
                    row = 64*p + (16 if m < 3 else 8)*(u//2) + 2*(u % 2)
                    a(f'ds_read_b64_tr_b16 {ar(m*64+(t*4+p)*8+2*u,2)}, v{11 if m < 3 else 12} offset:{(m%2)*16384 + row*64 + 32*t}')
        a('s_waitcnt lgkmcnt(0)')
    issue(0); issue(1)
    a('s_waitcnt vmcnt(16)'); read(0); issue(2)
    a('s_waitcnt vmcnt(16)'); read(1); issue(3)
    a('s_waitcnt vmcnt(16)'); read(2)
    a('s_waitcnt vmcnt(0)'); read(3)

vIDX, vGX, vGO, vACC, vTT = 2, 3, 4, 5, 6
XA, D, F = 8, 24, 48
def common_setup(a):
    srd_off(a, sRING, 4, RING, 4*SLOT)
    srd_off(a, sWS, 4, KF, TS + MB - KF)
    a(f'v_and_b32 v6, 8, v0\nv_mov_b32 v{vIDX}, 0x4444\nv_mov_b32 v7, 0xeeee\nv_cmp_ne_u32 vcc, 0, v6\nv_cndmask_b32 v{vIDX}, v{vIDX}, v7, vcc')
    a(f's_lshl_b32 s{sT}, s{sX}, 14\ns_lshl_b32 s{sT2}, s3, 12\ns_add_u32 s{sT}, s{sT}, s{sT2}')
    a(f'v_lshlrev_b32 v{vGX}, 4, v0\nv_add_u32 v{vGX}, s{sT}, v{vGX}\nv_add_u32 v{vGO}, {R_O}, v{vGX}')
    a(f'v_bfe_u32 v6, v0, 4, 1\nv_mul_u32_u24 v6, 576, v6\nv_bfe_u32 v7, v0, 5, 1\nv_lshl_add_u32 v6, v7, 6, v6\nv_and_b32 v7, 15, v0\nv_lshl_add_u32 v{vACC}, v7, 2, v6\ns_mul_i32 s{sT}, s3, 1152\nv_add_u32 v{vACC}, s{sT}, v{vACC}')
    a(f's_mov_b32 s{sSTEP}, 0\ns_mov_b32 s{sSLOT}, 0\ns_mov_b32 s{sNEXT}, {SLOT}\ns_mov_b32 s{sRST}, {2*SLOT}\ns_mov_b32 s{sBUD}, {POLL_BUDGET}')
    a(f's_lshl_b32 s{sSEG}, s{sCU}, 11\ns_lshl_b32 s{sKM}, s{sCU}, 9\ns_add_u32 s{sKM}, s{sKM}, {KM-KF}')

def retry_tail(a, again, ok):
    a(f's_cbranch_vccz {ok}\ns_cmp_eq_u32 s{sBUD}, 0\ns_cbranch_scc1 {ok}\ns_sub_u32 s{sBUD}, s{sBUD}, 1\ns_branch {again}\n{ok}:')

def gather_mm(a, vaddr, mats, lds_off, shadow=None, mid=None, st=None):
    again = a.label('ga'); ok = a.label('go')
    nt = 2 * len(mats)
    a(f'{again}:')
    for p in range(4): a(f'buffer_load_dwordx4 {vr(XA+4*p,4)}, v{vaddr}, s[{sRING}:{sRING+3}], s{sSLOT} offen offset:{1024*p} sc1')
    for r in range(4*nt): a(f'v_mov_b32 v{D+r}, 0')
    if shadow: shadow()
    def mm(mi, t, p): return f'v_smfmac_f32_16x16x64_bf16 {vr(D+8*mi+4*t,4)}, {vr(XA+4*p,4)}, {ar(mats[mi]*64+(t*4+p)*8,8)}, v{vIDX}'
    a('s_waitcnt vmcnt(0)')
    a(f'v_max3_u32 v{vTT}, v{XA}, v{XA+1}, v{XA+2}\nv_max3_u32 v{vTT+1}, v{XA+3}, v{XA+4}, v{XA+5}')
    a(mm(0, 0, 0))
    a(f'v_max3_u32 v{vTT}, v{vTT}, v{XA+6}, v{XA+7}\nv_max3_u32 v{vTT+1}, v{vTT+1}, v{XA+8}, v{XA+9}\nv_max3_u32 v{vTT}, v{vTT}, v{XA+10}, v{XA+11}')
    a(mm(0, 1, 0))
    a(f'v_max3_u32 v{vTT+1}, v{vTT+1}, v{XA+12}, v{XA+13}\nv_max3_u32 v{vTT}, v{vTT}, v{XA+14}, v{XA+15}\nv_max_u32 v{vTT}, v{vTT}, v{vTT+1}')
    a(mm(0, 0, 1))
    a(f'v_cmp_eq_u32 vcc, -1, v{vTT}')
    a(mm(0, 1, 1))
    retry_tail(a, again, ok)
    if st is not None: stamp(a, st)
    def fold(mi):
        d = D + 8*mi
        ops = [f'v_permlane32_swap_b32 v{d+r}, v{d+4+r}' for r in range(4)]
        ops += [f'v_add_f32 v{d+r}, v{d+r}, v{d+4+r}' for r in range(4)]
        ops += [f'ds_write_b32 v{vACC}, v{d+r} offset:{lds_off + mi*MS + r*144}' for r in range(4)]
        return ops
    pend = []
    for mi in range(len(mats)):
        seq = [(t, p) for p in range(4) for t in range(2)]
        if mi == 0: seq = seq[4:]
        for n, (t, p) in enumerate(seq):
            a(mm(mi, t, p))
            if n >= 1:
                for _ in range(3):
                    if pend: a(pend.pop(0))
                if mid and mi == len(mats) - 1 and not pend: mid(); mid = None
        assert not pend
        pend = fold(mi)
    for o in pend: a(o)

def pkadd(a, d, s, n):
    for r in range(0, n, 2): a(f'v_pk_add_f32 {vr(d+r,2)}, {vr(d+r,2)}, {vr(s+r,2)}')

def step_end(a, loop):
    a(f's_add_u32 s{sSTEP}, s{sSTEP}, 1\ns_mov_b32 s{sSLOT}, s{sNEXT}\ns_mov_b32 s{sNEXT}, s{sRST}')
    a(f's_add_u32 s{sRST}, s{sRST}, {SLOT}\ns_and_b32 s{sRST}, s{sRST}, {4*SLOT-1}\ns_branch {loop}')

def ts_flush(a, n, w):
    if not TIMING: return
    a('s_waitcnt lgkmcnt(0)')
    for i in range(n): a(f'v_writelane_b32 v250, s{sTS+2*i}, {i}')
    a(f's_lshl_b32 s{sT}, s{sCU}, 8\ns_add_u32 s{sT}, s{sT}, s{sSTEP}\ns_lshl_b32 s{sT}, s{sT}, 2\ns_add_u32 s{sT}, s{sT}, {w*64*4}\ns_lshl_b32 s{sT}, s{sT}, 3\ns_add_u32 s{sT}, s{sT}, {TS-KF}')
    a(f'v_lshlrev_b32 v251, 2, v0\ns_mov_b64 exec, 0xff\nbuffer_store_dword v250, v251, s[{sWS}:{sWS+3}], s{sT} offen\ns_mov_b64 exec, -1')

def wave0(a, sc, done):
    KX, VX, QK, QB, S, G, GM, VF, VM0, VM1, PB, PM, O = 64, 72, 176, 88, 92, 104, 120, 208, 128, 132, 136, 140, 144
    vQK, vKX, vVX, vSst, vSm, vSld, vSml, vOst, T = range(152, 161)
    vVr = 224
    R = f's[{sRING}:{sRING+3}]'
    a(f'v_and_b32 v{T}, 15, v0\nv_lshrrev_b32 v{T+1}, 4, v0\nv_bfe_u32 v{T+2}, v0, 5, 1\nv_bfe_u32 v{T+3}, v0, 4, 1')
    a(f'v_and_b32 v{T+4}, 7, v0\nv_mul_u32_u24 v{vQK}, 144, v{T+4}\nv_bfe_u32 v{T+4}, v0, 3, 1\nv_mul_u32_u24 v{T+4}, {MS}, v{T+4}\nv_add_u32 v{vQK}, v{vQK}, v{T+4}\nv_lshl_add_u32 v{vQK}, v{T+2}, 6, v{vQK}\nv_lshl_add_u32 v{vQK}, v{T+3}, 4, v{vQK}')
    a(f'v_and_b32 v{T+4}, 7, v0\nv_and_b32 v{T+5}, 8, v0\nv_lshl_add_u32 v{vKX}, v{T+5}, 1, v{T+4}')
    a(f'v_lshl_add_u32 v{vKX}, v{T+3}, 5, v{vKX}\nv_lshlrev_b32 v{vKX}, 4, v{vKX}\nv_lshl_add_u32 v{vKX}, v{T+2}, 10, v{vKX}')
    a(f'v_lshl_add_u32 v{vVX}, v{T+3}, 5, v{T}\nv_lshlrev_b32 v{vVX}, 4, v{vVX}\nv_lshl_add_u32 v{vVX}, v{T+2}, 10, v{vVX}')
    a(f's_mul_i32 s{sT}, s{sCU}, {S_STRIDE}\ns_add_u32 s{sT}, s{sT}, {R_S}\ns_and_b32 s{sT2}, s{sCU}, 0x7c\ns_mul_i32 s{sT2}, s{sT2}, {S_STRIDE}\ns_add_u32 s{sT2}, s{sT2}, {R_S}')
    a(f'v_lshlrev_b32 v{T+6}, 4, v{T+4}\nv_lshl_add_u32 v{T+7}, v{T+1}, 7, v{T+6}')
    a(f'v_add_u32 v{vSst}, s{sT}, v{T+7}\nv_add_u32 v{vSm}, 768, v{vSst}\nv_mov_b32 v{T+8}, {OOB}')
    a(f'v_cmp_ne_u32 vcc, 0, v{T+5}\nv_cndmask_b32 v{vSst}, v{vSst}, v{T+8}, vcc\nv_cndmask_b32 v{vSm}, v{vSm}, v{T+8}, vcc')
    a(f'v_cmp_eq_u32 vcc, 0, v{T+2}\nv_cndmask_b32 v{vSm}, v{vSm}, v{T+8}, vcc')
    a(f'v_lshl_add_u32 v{vSld}, v{T+5}, 6, v{T+7}\nv_add_u32 v{vSld}, s{sT2}, v{vSld}')
    a(f'v_lshl_add_u32 v{vSml}, v{T+2}, 7, v{T+6}\nv_lshl_add_u32 v{vSml}, v{T+3}, 3, v{vSml}\nv_lshrrev_b32 v{T+9}, 1, v{T+5}')
    a(f'v_add_u32 v{vSml}, v{vSml}, v{T+9}\nv_add_u32 v{vSml}, s{sT2}, v{vSml}\nv_add_u32 v{vSml}, 1024, v{vSml}')
    a(f'v_mul_u32_u24 v{vVr}, 288, v{T+1}\nv_lshl_add_u32 v{vVr}, v{T}, 2, v{vVr}\nv_add_u32 v{vVr}, {L_ACC+2*MS}, v{vVr}')
    for w in range(1, 4): a(f'v_add_u32 v{vVr+w}, {1152*w}, v{vVr}')
    a(f's_lshr_b32 s{sT}, s{sC}, 1\ns_lshl_b32 s{sT}, s{sT}, 10\ns_and_b32 s{sT2}, s{sC}, 1\ns_lshl_b32 s{sT2}, s{sT2}, 7\ns_add_u32 s{sT}, s{sT}, s{sT2}')
    a(f's_lshl_b32 s{sT2}, s{sX}, 14\ns_add_u32 s{sT}, s{sT}, s{sT2}\ns_add_u32 s{sT}, s{sT}, {R_O}')
    a(f'v_lshl_add_u32 v{vOst}, v{T+1}, 8, v{T+6}\nv_add_u32 v{vOst}, s{sT}, v{vOst}\nv_cmp_ne_u32 vcc, 0, v{T+5}\nv_cndmask_b32 v{vOst}, v{vOst}, v{T+8}, vcc')
    for r in (VM0+1, VM0+2, VM0+3, VM1+1, VM1+2, VM1+3, PM+1, PM+2, PM+3): a(f'v_mov_b32 v{r}, 0')
    a(f's_mov_b32 s34, {LOG2E}\ns_mov_b32 s35, {SCALE}\ns_barrier')
    loop = a.label('w0')
    a(f'{loop}:')
    stamp(a, 0)
    def frags():
        for t in range(2):
            a(f'ds_read_b128 {vr(KX+4*t,4)}, v{vKX} offset:{L_KX+128*t}\nds_read_b128 {vr(VX+4*t,4)}, v{vVX} offset:{L_VX+256*t}')
    def b1():
        a('s_waitcnt lgkmcnt(0)\ns_barrier')
        stamp(a, 2)
        for w in range(4):
            a(f'ds_read_b128 {vr(QK+8*w,4)}, v{vQK} offset:{L_ACC+1152*w}\nds_read_b128 {vr(QK+8*w+4,4)}, v{vQK} offset:{L_ACC+1152*w+32}')
    gather_mm(a, vGX, [0, 1, 2], L_ACC, frags, b1, 1)
    a('s_waitcnt lgkmcnt(8)' if not TIMING else 's_waitcnt lgkmcnt(0)')
    pkadd(a, QK, QK+8, 8)
    a('s_waitcnt lgkmcnt(4)' if not TIMING else 's_waitcnt lgkmcnt(0)')
    pkadd(a, QK+16, QK+24, 8); pkadd(a, QK, QK+16, 8)
    for r in range(4): a(f'v_cvt_pk_bf16_f32 v{QB+r}, v{QK+2*r}, v{QK+2*r+1}')
    a(f'v_mfma_f32_16x16x32_bf16 {vr(S,4)}, {vr(KX,4)}, {vr(QB,4)}, 0')
    a(f'v_mfma_f32_16x16x32_bf16 {vr(S+4,4)}, {vr(KX+4,4)}, {vr(QB,4)}, 0')
    a(f'v_mfma_f32_16x16x32_bf16 {vr(S+8,4)}, {vr(QB,4)}, {vr(QB,4)}, 0')
    a(f's_cmp_eq_u32 s{sSTEP}, {NSTEP-1}\ns_cbranch_scc1 {done}')
    a(f'buffer_store_dwordx4 {vr(S,4)}, v{vSst}, {R}, s{sSLOT} offen{sc}')
    a(f'buffer_store_dwordx4 {vr(S+4,4)}, v{vSst}, {R}, s{sSLOT} offen offset:512{sc}')
    a(f'buffer_store_dwordx4 {vr(S+8,4)}, v{vSm}, {R}, s{sSLOT} offen{sc}')
    stamp(a, 3)
    a('s_waitcnt lgkmcnt(0)\ns_barrier')
    for w in range(4):
        a(f'ds_read2_b32 {vr(VF+4*w,2)}, v{vVr+w} offset1:36\nds_read2_b32 {vr(VF+4*w+2,2)}, v{vVr+w} offset0:16 offset1:52')
    first = a.label('sf')
    again = a.label('s'); ok = a.label('so')
    a('s_waitcnt lgkmcnt(0)')
    pkadd(a, VF, VF+4, 4); pkadd(a, VF+8, VF+12, 4); pkadd(a, VF, VF+8, 4)
    a(f'v_cvt_pk_bf16_f32 v{VM0}, v{VF}, v{VF+1}\nv_cvt_pk_bf16_f32 v{VM1}, v{VF+2}, v{VF+3}')
    a(f'{again}:')
    for i in range(4):
        a(f'buffer_load_dwordx4 {vr(G+4*i,4)}, v{vSld}, {R}, s{sSLOT} offen offset:{S_STRIDE*i} sc1')
        a(f'buffer_load_dword v{GM+i}, v{vSml}, {R}, s{sSLOT} offen offset:{S_STRIDE*i} sc1')
    a('s_waitcnt vmcnt(4)')
    a(f'v_pk_add_f32 {vr(G,2)}, {vr(G,2)}, {vr(G+4,2)}\nv_pk_add_f32 {vr(G+2,2)}, {vr(G+2,2)}, {vr(G+6,2)}\nv_add_f32 v{GM}, v{GM}, v{GM+1}')
    a('s_waitcnt vmcnt(0)')
    a(f'v_pk_add_f32 {vr(G+8,2)}, {vr(G+8,2)}, {vr(G+12,2)}\nv_pk_add_f32 {vr(G+10,2)}, {vr(G+10,2)}, {vr(G+14,2)}\nv_add_f32 v{GM+2}, v{GM+2}, v{GM+3}')
    a(f'v_pk_add_f32 {vr(G,2)}, {vr(G,2)}, {vr(G+8,2)}\nv_pk_add_f32 {vr(G+2,2)}, {vr(G+2,2)}, {vr(G+10,2)}\nv_add_f32 v{G+4}, v{GM}, v{GM+2}')
    a(f'v_cmp_u_f32 s[60:61], v{G}, v{G+1}\nv_cmp_u_f32 s[62:63], v{G+2}, v{G+3}\nv_cmp_u_f32 vcc, v{G+4}, v{G+4}')
    a(f'v_cvt_pk_bf16_f32 v{G+8}, v{G}, v{G+1}\nv_cvt_pk_bf16_f32 v{G+9}, v{G+2}, v{G+3}\nv_cvt_pk_bf16_f32 v{G+10}, v{G+4}, v{G+4}')
    a('s_or_b64 s[60:61], s[60:61], s[62:63]\ns_or_b64 vcc, vcc, s[60:61]')
    retry_tail(a, again, ok)
    stamp(a, 4)
    unpack(a, G, G+1, G+8); unpack(a, G+2, G+3, G+9); a(f'v_lshlrev_b32 v{G+4}, 16, v{G+10}')
    for r in range(5): a(f'v_mul_f32 v{G+r}, s35, v{G+r}')
    a(f'v_cvt_pk_bf16_f32 v{G+8}, v{G}, v{G+1}\nv_cvt_pk_bf16_f32 v{G+9}, v{G+2}, v{G+3}\nv_cvt_pk_bf16_f32 v{G+10}, v{G+4}, v{G+4}')
    unpack(a, G, G+1, G+8); unpack(a, G+2, G+3, G+9); a(f'v_lshlrev_b32 v{G+4}, 16, v{G+10}')
    m, t = G+8, G+9
    a(f'v_max3_f32 v{m}, v{G}, v{G+1}, v{G+2}\nv_max3_f32 v{m}, v{m}, v{G+3}, v{G+4}')
    a(f'v_max_f32_dpp v{m}, v{m}, v{m} row_ror:8 row_mask:0xf bank_mask:0xf')
    for w in (16, 32): a(f'v_mov_b32 v{t}, v{m}\nv_permlane{w}_swap_b32 v{m}, v{t}\nv_max_f32 v{m}, v{m}, v{t}')
    a(f'v_mul_f32 v{m}, 0xbfb8aa3b, v{m}')
    for r in range(5): a(f'v_fma_f32 v{G+r}, v{G+r}, s34, v{m}')
    for r in range(5): a(f'v_exp_f32 v{G+r}, v{G+r}')
    a(f'v_cvt_pk_bf16_f32 v{PB}, v{G}, v{G+1}\nv_cvt_pk_bf16_f32 v{PB+1}, v{G+2}, v{G+3}')
    a(f'v_mov_b32_dpp v{t}, v{G+4} row_ror:8 row_mask:0xf bank_mask:0xf')
    a(f'v_mov_b32_dpp v{PB+2}, v{PB} row_ror:8 row_mask:0xf bank_mask:0xf\nv_mov_b32_dpp v{PB+3}, v{PB+1} row_ror:8 row_mask:0xf bank_mask:0xf')
    a(f'v_cvt_pk_bf16_f32 v{PM}, v{G+4}, v{t}')
    a(f'v_add_f32 v{G}, v{G}, v{G+1}\nv_add_f32 v{G+2}, v{G+2}, v{G+3}')
    a(f'v_mfma_f32_16x16x32_bf16 {vr(O,4)}, {vr(VX,4)}, {vr(PB,4)}, 0')
    a(f'v_add_f32 v{G}, v{G}, v{G+2}\nv_add_f32 v{m}, v{G}, v{G+4}')
    a(f'v_mfma_f32_16x16x32_bf16 {vr(O+4,4)}, {vr(VX+4,4)}, {vr(PB,4)}, 0')
    a(f'v_add_f32_dpp v{m}, v{m}, v{m} row_ror:8 row_mask:0xf bank_mask:0xf')
    a(f'v_mfma_f32_16x16x32_bf16 {vr(O,4)}, {vr(VM0,4)}, {vr(PM,4)}, {vr(O,4)}')
    a(f'v_mov_b32 v{t}, v{m}\nv_permlane16_swap_b32 v{m}, v{t}\nv_add_f32 v{m}, v{m}, v{t}')
    a(f'v_mfma_f32_16x16x32_bf16 {vr(O+4,4)}, {vr(VM1,4)}, {vr(PM,4)}, {vr(O+4,4)}')
    a(f'v_mov_b32 v{t}, v{m}\nv_permlane32_swap_b32 v{m}, v{t}\nv_add_f32 v{m}, v{m}, v{t}\nv_rcp_f32 v{m}, v{m}')
    for r in range(8): a(f'v_mul_f32 v{O+r}, v{O+r}, v{m}')
    for r in range(4): a(f'v_cvt_pk_bf16_f32 v{G+r}, v{O+2*r}, v{O+2*r+1}')
    a(f'buffer_store_dwordx4 {vr(G,4)}, v{vOst}, {R}, s{sSLOT} offen{sc}')
    stamp(a, 5)
    a('s_barrier')
    gather_mm(a, vGO, [3], L_M, None, None, 6)
    a('s_waitcnt lgkmcnt(0)\ns_barrier')
    stamp(a, 7)
    ts_flush(a, 8, 0)
    a('s_barrier')
    step_end(a, loop)

def helper(a, w, sc, done):
    R = f's[{sRING}:{sRING+3}]'; W = f's[{sWS}:{sWS+3}]'
    A0, A1, A2, A3, A4, T = 152, 153, 154, 155, 156, 160
    B = 64
    a(f'v_and_b32 v{T}, 15, v0\nv_lshrrev_b32 v{T+1}, 4, v0\nv_bfe_u32 v{T+2}, v0, 5, 1\nv_bfe_u32 v{T+3}, v0, 4, 1\nv_bfe_u32 v{T+4}, v0, 1, 3\nv_and_b32 v{T+5}, 1, v0')
    if w == 1:
        a(f'v_and_b32 v{T+6}, 7, v0\nv_mul_u32_u24 v{A0}, 144, v{T+6}\nv_lshl_add_u32 v{A0}, v{T+2}, 6, v{A0}\nv_lshl_add_u32 v{A0}, v{T+3}, 4, v{A0}')
        a(f'v_lshlrev_b32 v{A1}, 4, v{T+6}\nv_lshl_add_u32 v{A1}, v{T+1}, 7, v{A1}\nv_mov_b32 v{T+7}, {OOB}\nv_cmp_lt_u32 vcc, 7, v{T}\nv_cndmask_b32 v{A1}, v{A1}, v{T+7}, vcc')
        a(f'v_mul_u32_u24 v{A2}, 576, v{T+2}\nv_and_b32 v{T+6}, 31, v0\nv_lshl_add_u32 v{A2}, v{T+6}, 2, v{A2}\nv_add_u32 v{A2}, {L_ACC+2*MS}, v{A2}')
        for k in range(4): a(f'v_add_u32 v{224+k}, {1152*k}, v{A2}')
        a(f'v_mul_u32_u24 v{A3}, 144, v{T+4}\nv_lshl_add_u32 v{A3}, v{T+1}, 5, v{A3}\nv_lshl_add_u32 v{A3}, v{T+5}, 4, v{A3}')
        a(f's_lshl_b32 s{sT}, s{sC}, 2\ns_add_u32 s{sT}, s{sT}, s{sX}\ns_lshl_b32 s{sT}, s{sT}, 10\ns_add_u32 s{sT}, s{sT}, {R_P}')
        a(f'v_lshlrev_b32 v{A4}, 4, v0\nv_add_u32 v{A4}, s{sT}, v{A4}\nv_lshlrev_b32 v{T+8}, 3, v0')
    if w == 2:
        a(f's_lshr_b32 s{sT}, s{sC}, 1\ns_lshl_b32 s{sT}, s{sT}, 10\ns_and_b32 s{sT2}, s{sC}, 1\ns_lshl_b32 s{sT2}, s{sT2}, 7\ns_add_u32 s{sT}, s{sT}, s{sT2}')
        a(f's_lshl_b32 s{sT2}, s{sX}, 14\ns_add_u32 s{sT}, s{sT}, s{sT2}')
        a(f'v_lshlrev_b32 v{A0}, 3, v{T}\nv_lshl_add_u32 v{A0}, v{T+1}, 8, v{A0}\nv_add_u32 v{A0}, s{sT}, v{A0}\nv_add_u32 v{A4}, {R_O}, v{A0}')
        a(f's_lshl_b32 s{sT}, s{sC}, 12\ns_add_u32 s{sT}, s{sT}, {R_P}\nv_lshlrev_b32 v{A1}, 4, v0\nv_add_u32 v{A1}, s{sT}, v{A1}')
        a(f's_lshl_b32 s{sT}, s{sX}, 10\nv_add_u32 v{A3}, s{sT}, v{A1}')
        a(f's_mul_i32 s{sT}, s{sCU}, {S_STRIDE}\ns_add_u32 s{sT}, s{sT}, {R_S}\nv_lshlrev_b32 v{A2}, 4, v0\nv_add_u32 v{A2}, s{sT}, v{A2}')
        a(f'v_lshlrev_b32 v{T+6}, 2, v0\nv_add_u32 v{T+6}, s{sT}, v{T+6}')
        for r in range(4): a(f'v_mov_b32 v{B+32+r}, -1')
        a('s_load_dwordx2 s[60:61], s[0:1], 8\ns_waitcnt lgkmcnt(0)')
        srd(a, sW, 60, 16384)
        a(f'v_lshlrev_b32 v{T+7}, 11, v{T+4}\nv_lshl_add_u32 v{T+7}, v{T+1}, 4, v{T+7}\nv_lshl_add_u32 v{T+7}, v{T+5}, 3, v{T+7}\ns_lshl_b32 s{sT}, s{sC}, 6')
        a(f'buffer_load_dwordx2 {vr(B,2)}, v{T+7}, s[{sW}:{sW+3}], s{sT} offen\ns_waitcnt vmcnt(0)')
        a(f'buffer_store_dwordx2 {vr(B,2)}, v{A0}, {R}, 0 offen{sc}')
    def kv_dma():
        a(f's_mov_b32 m0, {L_KX}\ns_add_u32 s{sT}, s{sSEG}, {VT-KF}')
        a(f'buffer_load_dwordx4 v{A0}, {W}, s{sSEG} offen lds\nbuffer_load_dwordx4 v{A0}, {W}, s{sSEG} offen offset:1024 lds')
        a(f's_mov_b32 m0, {L_VX}')
        a(f'buffer_load_dwordx4 v{A0}, {W}, s{sT} offen lds\nbuffer_load_dwordx4 v{A0}, {W}, s{sT} offen offset:1024 lds')
        a(f's_add_u32 s{sSEG}, s{sSEG}, {256*1024}')
    def zero(off, n):
        for k in range(-(-n // 1024)):
            if n - k*1024 < 1024: a(f's_mov_b64 exec, {hex((1 << ((n - k*1024)//16)) - 1)}')
            a(f'ds_write_b128 v{A0}, {vr(B,4)} offset:{off+1024*k}')
        a('s_mov_b64 exec, -1')
    if w == 3:
        a(f'v_lshlrev_b32 v{A0}, 4, v0')
        for r in range(4): a(f'v_mov_b32 v{B+r}, 0')
        kv_dma(); a('s_waitcnt vmcnt(0)')
    a('s_barrier')
    loop = a.label(f'w{w}')
    a(f'{loop}:')
    gather_mm(a, vGX, [0, 1, 2], L_ACC, None, lambda: a('s_waitcnt lgkmcnt(0)\ns_barrier'))
    if w != 1: a(f's_cmp_eq_u32 s{sSTEP}, {NSTEP-1}\ns_cbranch_scc1 {done}')
    if w == 2:
        a(f'buffer_store_dwordx2 {vr(B+32,2)}, v{A0}, {R}, s{sRST} offen{sc}\nbuffer_store_dwordx2 {vr(B+32,2)}, v{A4}, {R}, s{sRST} offen{sc}')
        a(f'buffer_store_dwordx4 {vr(B+32,4)}, v{A2}, {R}, s{sRST} offen{sc}\nbuffer_store_dword v{B+32}, v{T+6}, {R}, s{sRST} offen offset:1024{sc}')
        a(f'buffer_store_dwordx4 {vr(B+32,4)}, v{A3}, {R}, s{sRST} offen sc1')
    if w == 3: kv_dma()
    a('s_waitcnt lgkmcnt(0)\ns_barrier')
    if w == 1:
        for k in range(4):
            b = B + 12*k
            a(f'ds_read_b128 {vr(b,4)}, v{A0} offset:{L_ACC+MS+1152*k}\nds_read_b128 {vr(b+4,4)}, v{A0} offset:{L_ACC+MS+1152*k+32}')
            a(f'ds_read2_b32 {vr(b+8,2)}, v{224+k} offset1:36\nds_read2_b32 {vr(b+10,2)}, v{224+k} offset0:72 offset1:108')
        a(f's_add_u32 s{sT}, s{sKM}, {VM-KM}\ns_waitcnt lgkmcnt(0)')
        pkadd(a, B, B+12, 12); pkadd(a, B+24, B+36, 12); pkadd(a, B, B+24, 12)
        for r in range(6): a(f'v_cvt_pk_bf16_f32 v{B+12+r}, v{B+2*r}, v{B+2*r+1}')
        a(f'buffer_store_dwordx4 {vr(B+12,4)}, v{A1}, {W}, s{sKM} offen sc1\nbuffer_store_dwordx2 {vr(B+16,2)}, v{T+8}, {W}, s{sT} offen sc1')
        a(f's_add_u32 s{sKM}, s{sKM}, 65536\ns_cmp_eq_u32 s{sSTEP}, {NSTEP-1}\ns_cbranch_scc1 {done}2')
    a('s_barrier')
    gather_mm(a, vGO, [3], L_M)
    a('s_waitcnt lgkmcnt(0)\ns_barrier')
    if w == 1:
        for k in range(4): a(f'ds_read_b128 {vr(B+4*k,4)}, v{A3} offset:{L_M+1152*k}')
        a('s_waitcnt lgkmcnt(2)'); pkadd(a, B, B+4, 4); a('s_waitcnt lgkmcnt(0)'); pkadd(a, B+8, B+12, 4); pkadd(a, B, B+8, 4)
        a(f'buffer_store_dwordx4 {vr(B,4)}, v{A4}, {R}, s{sSLOT} offen sc1')
    if w == 2:
        stamp(a, 0)
        again = a.label('p'); ok = a.label('po')
        a(f'{again}:')
        for i in range(4): a(f'buffer_load_dwordx4 {vr(B+4*i,4)}, v{A1}, {R}, s{sSLOT} offen offset:{1024*i} sc1')
        a('s_waitcnt vmcnt(2)')
        a(f'v_pk_add_f32 {vr(B,2)}, {vr(B,2)}, {vr(B+4,2)}\nv_pk_add_f32 {vr(B+2,2)}, {vr(B+2,2)}, {vr(B+6,2)}\ns_waitcnt vmcnt(0)')
        a(f'v_pk_add_f32 {vr(B+8,2)}, {vr(B+8,2)}, {vr(B+12,2)}\nv_pk_add_f32 {vr(B+10,2)}, {vr(B+10,2)}, {vr(B+14,2)}')
        a(f'v_pk_add_f32 {vr(B,2)}, {vr(B,2)}, {vr(B+8,2)}\nv_pk_add_f32 {vr(B+2,2)}, {vr(B+2,2)}, {vr(B+10,2)}')
        a(f'v_cmp_u_f32 s[60:61], v{B}, v{B+1}\nv_cmp_u_f32 vcc, v{B+2}, v{B+3}')
        a(f'v_cvt_pk_bf16_f32 v{B+4}, v{B}, v{B+1}\nv_cvt_pk_bf16_f32 v{B+5}, v{B+2}, v{B+3}\ns_or_b64 vcc, vcc, s[60:61]')
        retry_tail(a, again, ok)
        a(f'buffer_store_dwordx2 {vr(B+4,2)}, v{A0}, {R}, s{sNEXT} offen{sc}')
        stamp(a, 1)
        ts_flush(a, 2, 1)
    a('s_barrier')
    step_end(a, loop)

def chain_body(a, fin):
    common_setup(a)
    safe = a.label('safe')
    a(f's_cmp_eq_u32 s{sMODE}, 2\ns_cbranch_scc1 {safe}')
    for sc in ('', ' sc1'):
        if sc: a(f'{safe}:')
        done = a.label('done'); lw = [a.label('wv') for _ in range(4)]
        for w in range(1, 4): a(f's_cmp_eq_u32 s3, {w}\ns_cbranch_scc1 {lw[w]}')
        wave0(a, sc, done)
        for w in range(1, 4):
            a(f'{lw[w]}:'); helper(a, w, sc, done)
        a(f'{done}:\ns_waitcnt lgkmcnt(0)\ns_barrier\n{done}2:\ns_branch {fin}')

def chain_kernel(a, label, force_safe=False):
    kernel_begin(a, label); end = a.label('end'); load = a.label('load'); wm = a.label('wm')
    a(f's_cmp_ge_u32 s2, 256\ns_cbranch_scc1 {end}')
    a('v_lshrrev_b32 v1, 6, v0\nv_readfirstlane_b32 s3, v1\nv_and_b32 v0, 63, v0')
    a('s_load_dwordx2 s[4:5], s[0:1], 112\ns_waitcnt lgkmcnt(0)')
    roles(a, end, 256)
    a(f's_cmp_ge_u32 s{sX}, 4\ns_cbranch_scc1 {wm}\ns_cmp_ge_u32 s{sC}, 32\ns_cbranch_scc1 {wm}\n{load}:')
    load_weights(a)
    a(f'{wm}:')
    wait_mode(a, load, end)
    if force_safe: a(f's_mov_b32 s{sMODE}, 2')
    chain_body(a, end)
    a(f'{end}:\ns_waitcnt vmcnt(0)\ns_endpgm')
    kernel_desc(a, label, 512, 256)
    return (label, 256, 256, CHAIN_LDS)
```

```python
from asmlib import *
from layout import *
from gemm import *

def common_entry(a, ngrid, end):
    a(f's_cmp_ge_u32 s2, {ngrid}\ns_cbranch_scc1 {end}')
    a('v_lshrrev_b32 v1, 6, v0\nv_readfirstlane_b32 s3, v1\nv_and_b32 v0, 63, v0')

def qkv_kernel(a, label, ncol0=0, ncol=48):
    ng = 8 * ncol
    kernel_begin(a, label)
    end = a.label('end')
    common_entry(a, ng, end)
    a('s_load_dwordx2 s[4:5], s[0:1], 112')
    a('s_and_b32 s8, s2, 7\ns_lshr_b32 s9, s2, 3\ns_and_b32 s10, s9, 7\ns_lshr_b32 s9, s9, 3\ns_lshl_b32 s9, s9, 3\ns_add_u32 s9, s9, s8')
    a(f's_add_u32 s9, s9, {ncol0}')
    a('s_lshr_b32 s11, s9, 4\ns_and_b32 s9, s9, 15')
    a('s_lshl_b32 s12, s11, 3\ns_add_u32 s12, s12, 16\ns_load_dwordx2 s[6:7], s[0:1], s12\ns_waitcnt lgkmcnt(0)')
    srd_off(a, S_ASRD, 4, H1F, 4*MB)
    srd(a, S_WSRD, 6, 8*MB)
    a(f's_lshl_b32 s12, s11, 24\ns_add_u32 s12, s12, {QF}\ns_add_u32 s36, s4, s12\ns_addc_u32 s37, s5, 0\ns_mov_b32 s38, {16*MB}\ns_mov_b32 s39, 0x00020000')
    g0 = Gemm(256, 256, 4, False, vbase=8); g1 = Gemm(256, 256, 4, True, vbase=8)
    g0.setup(a, 0, 3, 64, 8192); g1.KB = 64; g1.swave = 3
    a(f's_mul_i32 s{S_AOFF}, s10, {8*64*1024}\ns_lshl_b32 s{S_WOFF}, s9, 9\ns_mov_b32 s{S_CNT}, 32')
    a(f's_lshr_b32 s12, s3, 1\ns_lshl_b32 s12, s12, 2\ns_lshl_b32 s13, s10, 3\ns_add_u32 s12, s12, s13\ns_lshl_b32 s12, s12, 18')
    a(f's_and_b32 s13, s3, 1\ns_lshl_b32 s13, s13, 3\ns_lshl_b32 s14, s9, 4\ns_add_u32 s13, s13, s14\ns_lshl_b32 s13, s13, 10\ns_add_u32 s12, s12, s13')
    a('v_lshlrev_b32 v2, 4, v0')
    g0.prologue(a)
    lv = a.label('vt'); le = a.label('epi')
    a(f's_cmp_eq_u32 s11, 2\ns_cbranch_scc1 {lv}')
    g0.main(a)
    a(f's_branch {le}\n{lv}:')
    g1.main(a)
    a(f'{le}:')
    g0.epi_bf16(a, 36, 12, 2, 256*1024)
    a(f's_waitcnt vmcnt(0)\n{end}:\ns_endpgm')
    kernel_desc(a, label, 512, 256)
    return (label, ng, 256, g0.lds)

KINDS = {
    'wo':  (OF, 256, 40, 2048, 4096),
    'ff1': (H2F, 64, 64, 7168, 1024),
    'ff2': (FF, 224, 72, 2048, 3584),
}
def gemm_task(a, g, kind, srow, scol):
    aoff, KB, slot, NB, K = KINDS[kind]
    mt, nt = g.mt, g.nt
    a(f's_load_dwordx2 s[6:7], s[0:1], {slot}')
    if kind == 'ff2': a('s_load_dwordx2 s[14:15], s[0:1], 96')
    srd_off(a, S_ASRD, 4, aoff, 64*KB*1024)
    g.setup(a, 0, 3, KB, NB)
    a('s_waitcnt lgkmcnt(0)')
    srd(a, S_WSRD, 6, K*NB)
    a(f's_mul_i32 s{S_AOFF}, s{srow}, {2*mt*KB*1024}\ns_mul_i32 s{S_WOFF}, s{scol}, {g.TN*2}\ns_mov_b32 s{S_CNT}, {K//32}')
    g.prologue(a)
    a(f's_lshr_b32 s16, s3, 1\ns_mul_i32 s16, s16, {mt}\ns_mul_i32 s18, s{srow}, {2*mt}\ns_add_u32 s16, s16, s18')
    a(f's_and_b32 s17, s3, 1\ns_mul_i32 s17, s17, {2*nt}\ns_mul_i32 s18, s{scol}, {4*nt}\ns_add_u32 s17, s17, s18')
    a('v_lshlrev_b32 v2, 4, v0')
    if kind == 'ff1':
        srd_off(a, 36, 4, FF, 64*224*1024)
        a(f's_mul_i32 s12, s16, {224*1024}\ns_lshl_b32 s18, s17, 10\ns_add_u32 s12, s12, s18')
        g.main(a)
        g.epi_bf16(a, 36, 12, 2, 224*1024, relu=True)
        return g.vend
    srd_off(a, 36, 4, X1F, 4*MB)
    srd_off(a, 32, 4, MODF + (2 if kind == 'wo' else 5)*4096, 4096)
    a('s_lshl_b32 s12, s16, 16\ns_lshl_b32 s18, s17, 10\ns_add_u32 s12, s12, s18\ns_lshl_b32 s13, s17, 6')
    a('v_lshrrev_b32 v3, 5, v0\nv_lshlrev_b32 v4, 4, v3\nv_lshlrev_b32 v3, 5, v3')
    if kind == 'ff2':
        srd(a, 28, 14, 4*MB)
        a('s_lshl_b32 s19, s16, 16\ns_lshl_b32 s18, s17, 5\ns_add_u32 s19, s19, s18')
        a('v_and_b32 v5, 31, v0\nv_lshlrev_b32 v5, 11, v5\nv_add_u32 v4, v4, v5')
    g.main(a)
    R0 = (g.vend + 3) // 4 * 4
    if kind == 'wo': return g.epi_res(a, 36, 32, 36, 12, 2, 13, 3, R0)
    return g.epi_res(a, 36, 32, 28, 12, 2, 13, 3, R0, True, 19, 4)

def gemm_kernel(a, label, kind, TM, TN, S):
    N = KINDS[kind][3] // 2
    nr, nc = 2048 // TM, N // TN
    ng = nr * nc
    kernel_begin(a, label)
    end = a.label('end')
    common_entry(a, ng, end)
    a('s_load_dwordx2 s[4:5], s[0:1], 112')
    per = nr // 8
    a(f's_and_b32 s8, s2, 7\ns_mul_i32 s8, s8, {per}\ns_lshr_b32 s9, s2, 3\ns_and_b32 s10, s9, {per-1}\ns_add_u32 s8, s8, s10\ns_lshr_b32 s9, s9, {per.bit_length()-1}')
    a('s_waitcnt lgkmcnt(0)')
    g = Gemm(TM, TN, S, False, vbase=8)
    nv = gemm_task(a, g, kind, 8, 9)
    a(f's_waitcnt vmcnt(0)\n{end}:\ns_endpgm')
    nv = (nv + 7) // 8 * 8
    kernel_desc(a, label, nv + 16 * g.mt * g.nt, nv)
    return (label, ng, 256, g.lds)
```

```python
from asmlib import *
from layout import *

def entry(a, ngrid, end):
    a(f's_cmp_ge_u32 s2, {ngrid}\ns_cbranch_scc1 {end}')
    a('v_lshrrev_b32 v1, 6, v0\nv_readfirstlane_b32 s3, v1\nv_and_b32 v0, 63, v0')

def unpack(a, lo, hi, src):
    a(f'v_lshlrev_b32 v{lo}, 16, v{src}\nv_and_b32 v{hi}, 0xffff0000, v{src}')
def rnd2(a, x0, x1, t):
    a(f'v_cvt_pk_bf16_f32 v{t}, v{x0}, v{x1}'); unpack(a, x0, x1, t)
def rnd1(a, x):
    a(f'v_cvt_pk_bf16_f32 v{x}, v{x}, v{x}\nv_lshlrev_b32 v{x}, 16, v{x}')
def xsum_swap(a, x, t, which, op='add'):
    a(f'v_mov_b32 v{t}, v{x}\nv_permlane{which}_swap_b32 v{x}, v{t}\nv_{op}_f32 v{x}, v{x}, v{t}')

RING_BYTES = 2 * MB
def mod_kernel(a, label):
    kernel_begin(a, label); end = a.label('end'); fill = a.label('fill')
    a(f's_cmp_ge_u32 s2, 256\ns_cbranch_scc1 {end}')
    a('s_load_dwordx2 s[4:5], s[0:1], 112\ns_load_dwordx2 s[6:7], s[0:1], 80\ns_load_dwordx2 s[8:9], s[0:1], 88')
    a(f's_cmp_ge_u32 s2, 192\ns_cbranch_scc1 {fill}')
    a('v_lshrrev_b32 v2, 2, v0\nv_lshlrev_b32 v3, 1, v2')
    a('v_mul_u32_u24 v4, 12288, v2\nv_and_b32 v5, 3, v0\nv_lshlrev_b32 v5, 4, v5\nv_add_u32 v4, v4, v5')
    a('s_lshl_b32 s10, s2, 6\ns_waitcnt lgkmcnt(0)')
    srd(a, 12, 6, 2048); srd(a, 16, 8, 12288*1024); srd_off(a, 20, 4, MODF, 6*4096)
    for r in range(4):
        a(f'buffer_load_ushort v{8+r}, v3, s[12:15], 0 offen offset:{512*r}')
    for r in range(4):
        a(f'buffer_load_dwordx4 {vr(12+4*r,4)}, v4, s[16:19], s10 offen')
        if r < 3: a(f's_add_u32 s10, s10, {256*12288}')
    for i in range(8): a(f'v_mov_b32 v{32+i}, 0')
    a('s_waitcnt vmcnt(4)')
    for r in range(4):
        x = 8 + r
        a(f'v_lshlrev_b32 v{x}, 16, v{x}\nv_mul_f32 v6, 0xbfb8aa3b, v{x}\nv_exp_f32 v6, v6\nv_add_f32 v6, 1.0, v6\nv_rcp_f32 v6, v6\nv_mul_f32 v{x}, v{x}, v6')
        rnd1(a, x)
    for r in range(4):
        a(f's_waitcnt vmcnt({3-r})')
        for i in range(4):
            unpack(a, 6, 7, 12+4*r+i)
            a(f'v_fmac_f32 v{32+2*i}, v6, v{8+r}\nv_fmac_f32 v{33+2*i}, v7, v{8+r}')
    for rot in (4, 8):
        for i in range(8): a(f'v_add_f32_dpp v{32+i}, v{32+i}, v{32+i} row_ror:{rot} row_mask:0xf bank_mask:0xf')
    for w in (16, 32):
        for i in range(8): a(f'v_mov_b32 v{40+i}, v{32+i}')
        for i in range(8): a(f'v_permlane{w}_swap_b32 v{32+i}, v{40+i}')
        for i in range(8): a(f'v_add_f32 v{32+i}, v{32+i}, v{40+i}')
    a('v_lshrrev_b32 v2, 6, v0\nv_lshlrev_b32 v2, 7, v2\nv_and_b32 v3, 63, v0\nv_lshlrev_b32 v5, 5, v3\nv_add_u32 v2, v2, v5')
    a('s_mov_b64 exec, 0xf\nds_write_b128 v2, v[32:35]\nds_write_b128 v2, v[36:39] offset:16\ns_mov_b64 exec, -1')
    a('s_waitcnt lgkmcnt(0)\ns_barrier\nv_cmp_gt_u32 vcc, 32, v0\ns_and_saveexec_b64 s[24:25], vcc')
    a(f's_cbranch_execz {end}')
    a('v_lshlrev_b32 v2, 2, v0')
    for w in range(16): a(f'ds_read_b32 v{8+w}, v2 offset:{128*w}')
    a('s_waitcnt lgkmcnt(0)')
    for w in range(1, 16): a(f'v_add_f32 v8, v8, v{8+w}')
    rnd1(a, 8)
    a('s_lshr_b32 s10, s2, 5')
    a('v_add_f32 v9, 1.0, v8'); rnd1(a, 9)
    a('s_cmp_eq_u32 s10, 1\ns_cselect_b32 s11, 1, 0\ns_cmp_eq_u32 s10, 4\ns_cselect_b32 s11, 1, s11\ns_cmp_eq_u32 s11, 1\ns_cselect_b64 vcc, -1, 0')
    a('v_cndmask_b32 v8, v8, v9, vcc')
    a('v_and_b32 v2, 16, v0\nv_lshlrev_b32 v2, 2, v2\nv_and_b32 v3, 4, v0\nv_lshlrev_b32 v3, 3, v3\nv_add_u32 v2, v2, v3')
    a('v_and_b32 v3, 8, v0\nv_lshlrev_b32 v3, 1, v3\nv_add_u32 v2, v2, v3\nv_and_b32 v3, 3, v0\nv_lshlrev_b32 v3, 2, v3\nv_add_u32 v2, v2, v3')
    a(f's_lshl_b32 s10, s2, 7\nbuffer_store_dword v8, v2, s[20:23], s10 offen\ns_waitcnt vmcnt(0)\ns_endpgm')
    a(f'{fill}:\ns_waitcnt lgkmcnt(0)')
    srd_off(a, 20, 4, RING, RING_BYTES)
    per = RING_BYTES // 64
    a(f's_sub_u32 s10, s2, 192\ns_mul_i32 s10, s10, {per}\nv_lshlrev_b32 v2, 4, v0')
    for i in range(4): a(f'v_mov_b32 v{4+i}, -1')
    for k in range(per // 16384):
        a('buffer_store_dwordx4 v[4:7], v2, s[20:23], s10 offen\ns_add_u32 s10, s10, 16384')
    srd_off(a, 24, 4, CTL, 65536)
    a('s_sub_u32 s10, s2, 192\ns_lshl_b32 s10, s10, 10\nv_mov_b32 v8, 0\nv_cmp_gt_u32 vcc, 0x100, v0\nv_lshlrev_b32 v3, 2, v0\ns_and_saveexec_b64 s[28:29], vcc')
    a('buffer_store_dword v8, v3, s[24:27], s10 offen')
    a(f's_waitcnt vmcnt(0)\n{end}:\ns_endpgm')
    kernel_desc(a, label, 48, 48)
    return (label, 256, 1024, 2048)

def ln_body(a, first, stb, sq, lds0=0):
    X = 32
    if first: srd(a, 12, 6, 4*MB)
    else: srd_off(a, 12, 4, X1F, 4*MB)
    srd_off(a, 16, 4, MODF + (0 if first else 3*4096), 2*4096)
    srd_off(a, 20, 4, H1F if first else H2F, 4*MB)
    a('v_and_b32 v2, 31, v0\nv_lshrrev_b32 v3, 5, v0')
    if first:
        a(f'v_lshlrev_b32 v4, 11, v2\nv_lshlrev_b32 v5, 4, v3\nv_add_u32 v4, v4, v5')
        a(f's_lshl_b32 s24, s{stb}, 16\ns_lshl_b32 s25, s3, 9\ns_add_u32 s24, s24, s25')
        bs, bsh = 32, 5
    else:
        a(f'v_lshlrev_b32 v4, 4, v0\ns_lshl_b32 s24, s{stb}, 16\ns_lshl_b32 s25, s3, 14\ns_add_u32 s24, s24, s25')
        bs, bsh = 1024, 10
    for g in range(4):
        a(f's_add_u32 s25, s{sq}, {g}\ns_and_b32 s25, s25, 3\ns_lshl_b32 s25, s25, {bsh+2}\ns_add_u32 s25, s25, s24')
        for i in range(4):
            a(f'buffer_load_dwordx4 {vr(X+16*g+4*i,4)}, v4, s[12:15], s25 offen offset:{bs*i}')
    a(f's_lshl_b32 s25, s3, 10\ns_lshl_b32 s26, s{sq}, 8\ns_add_u32 s25, s25, s26\nv_lshlrev_b32 v5, 5, v3')
    a('s_add_u32 s26, s25, 4096')
    M = 96
    for i in range(4):
        for h in range(2):
            a(f'buffer_load_dwordx4 {vr(M+8*i+4*h,4)}, v5, s[16:19], s25 offen offset:{64*i+16*h}')
            a(f'buffer_load_dwordx4 {vr(M+32+8*i+4*h,4)}, v5, s[16:19], s26 offen offset:{64*i+16*h}')
    a('v_mov_b32 v6, 0x3f803f80')
    for i in range(4): a(f'v_mov_b32 v{8+i}, 0')
    for g in range(4):
        a(f's_waitcnt vmcnt({16+12-4*g})')
        for r in range(0, 16, 2):
            x = X + 16*g + r
            a(f'v_dot2c_f32_bf16 v8, v{x}, v6\nv_dot2c_f32_bf16 v9, v{x}, v{x}')
            a(f'v_dot2c_f32_bf16 v10, v{x+1}, v6\nv_dot2c_f32_bf16 v11, v{x+1}, v{x+1}')
    a('v_add_f32 v8, v8, v10\nv_add_f32 v9, v9, v11\nv_mov_b32 v10, v8\nv_mov_b32 v11, v9')
    a('v_permlane32_swap_b32 v8, v10\nv_permlane32_swap_b32 v9, v11\nv_add_f32 v8, v8, v10\nv_add_f32 v9, v9, v11')
    a(f'v_lshlrev_b32 v7, 3, v2\ns_lshl_b32 s25, s3, 8\nv_add_u32 v12, s25, v7\nds_write_b64 v12, v[8:9] offset:{lds0}')
    if first:
        for i in range(4):
            a(f'v_permlane32_swap_b32 v{X+4*i}, v{X+4*i+2}\nv_permlane32_swap_b32 v{X+4*i+1}, v{X+4*i+3}')
    a(f's_lshl_b32 s24, s{stb}, 16\ns_lshl_b32 s25, s3, 14\ns_add_u32 s24, s24, s25\ns_lshl_b32 s25, s{sq}, 12\ns_add_u32 s24, s24, s25\nv_lshlrev_b32 v4, 4, v0')
    if first:
        srd_off(a, 12, 4, X1F, 4*MB)
        for i in range(4): a(f'buffer_store_dwordx4 {vr(X+4*i,4)}, v4, s[12:15], s24 offen offset:{1024*i}')
    a('s_waitcnt lgkmcnt(0)\ns_barrier')
    for w in range(4): a(f'ds_read_b64 {vr(8+2*w,2)}, v7 offset:{lds0+256*w}')
    a('s_waitcnt lgkmcnt(0)')
    a('v_add_f32 v8, v8, v10\nv_add_f32 v9, v9, v11\nv_add_f32 v12, v12, v14\nv_add_f32 v13, v13, v15\nv_add_f32 v8, v8, v12\nv_add_f32 v9, v9, v13')
    a('v_mul_f32 v8, 0x3a800000, v8\nv_mul_f32 v9, 0x3a800000, v9\nv_fma_f32 v9, -v8, v8, v9\nv_max_f32 v9, 0, v9')
    rnd2(a, 8, 9, 10)
    a('v_add_f32 v9, 0x3727c5ac, v9'); rnd1(a, 9)
    a('v_sqrt_f32 v9, v9'); rnd1(a, 9)
    a(f'v_rcp_f32 v9, v9\ns_waitcnt vmcnt({4 if first else 0})')
    for i in range(4):
        T = 12
        for r in range(4): unpack(a, T+2*r, T+2*r+1, X+4*i+r)
        for e in range(8): a(f'v_sub_f32 v{T+e}, v{T+e}, v8')
        for r in range(4): a(f'v_cvt_pk_bf16_f32 v{T+8+r}, v{T+2*r}, v{T+2*r+1}')
        for r in range(4): unpack(a, T+2*r, T+2*r+1, T+8+r)
        for e in range(8): a(f'v_mul_f32 v{T+e}, v{T+e}, v9')
        for r in range(4): a(f'v_cvt_pk_bf16_f32 v{T+8+r}, v{T+2*r}, v{T+2*r+1}')
        for r in range(4): unpack(a, T+2*r, T+2*r+1, T+8+r)
        for e in range(8): a(f'v_mul_f32 v{T+e}, v{T+e}, v{M+32+8*i+e}')
        for r in range(4): a(f'v_cvt_pk_bf16_f32 v{T+8+r}, v{T+2*r}, v{T+2*r+1}')
        for r in range(4): unpack(a, T+2*r, T+2*r+1, T+8+r)
        for e in range(8): a(f'v_add_f32 v{T+e}, v{T+e}, v{M+8*i+e}')
        for r in range(4): a(f'v_cvt_pk_bf16_f32 v{X+4*i+r}, v{T+2*r}, v{T+2*r+1}')
        a(f'buffer_store_dwordx4 {vr(X+4*i,4)}, v4, s[20:23], s24 offen offset:{1024*i}')

def ln_kernel(a, label, first):
    kernel_begin(a, label); end = a.label('end')
    entry(a, 256, end)
    a('s_load_dwordx2 s[4:5], s[0:1], 112\ns_load_dwordx2 s[6:7], s[0:1], 0\ns_lshr_b32 s8, s2, 2\ns_and_b32 s9, s2, 3\ns_waitcnt lgkmcnt(0)')
    ln_body(a, first, 8, 9)
    a(f's_waitcnt vmcnt(0)\n{end}:\ns_endpgm')
    kernel_desc(a, label, 160, 160)
    return (label, 256, 256, 1024)

SCALE = '0x3db504f3'
LOG2E = '0x3fb8aa3b'
def att_body(a, sseg, shead):
    Q, K, KMr, V, VMr, S, SM, O, T = 8, 40, 72, 104, 136, 152, 168, 8, 184
    srd_off(a, 12, 4, QF, 104*MB - QF)
    a(f's_lshl_b32 s16, s{sseg}, 18\ns_lshl_b32 s17, s{shead}, 13\ns_add_u32 s16, s16, s17')
    a(f's_add_u32 s17, s16, {KF-QF}\ns_add_u32 s18, s16, {VT-QF}\ns_add_u32 s19, s16, {OF-QF}')
    a(f's_lshl_b32 s20, s{sseg}, 16\ns_lshl_b32 s21, s{shead}, 11\ns_add_u32 s20, s20, s21\ns_add_u32 s21, s20, {VM-QF}\ns_add_u32 s20, s20, {KM-QF}')
    a('v_lshlrev_b32 v2, 4, v0\nv_add_u32 v3, 4096, v2\nv_lshlrev_b32 v5, 3, v0')
    a('v_lshrrev_b32 v6, 5, v0\nv_lshlrev_b32 v4, 7, v6\nv_and_b32 v7, 7, v0\nv_lshlrev_b32 v7, 4, v7\nv_add_u32 v4, v4, v7')
    for b in range(8):
        va = 2 if b < 4 else 3
        a(f'buffer_load_dwordx4 {vr(Q+4*b,4)}, v{va}, s[12:15], s16 offen offset:{(b%4)*1024}')
        a(f'buffer_load_dwordx4 {vr(K+4*b,4)}, v{va}, s[12:15], s17 offen offset:{(b%4)*1024}')
        a(f'buffer_load_dwordx4 {vr(KMr+4*b,4)}, v4, s[12:15], s20 offen offset:{b*256} sc1')
    for b in range(8):
        a(f'buffer_load_dwordx4 {vr(V+4*b,4)}, v{2 if b < 4 else 3}, s[12:15], s18 offen offset:{(b%4)*1024}')
    for e in range(4):
        a(f'buffer_load_dwordx2 {vr(VMr+4*e,2)}, v5, s[12:15], s21 offen offset:{e*512} sc1')
        a(f'v_mov_b32 v{VMr+4*e+2}, 0\nv_mov_b32 v{VMr+4*e+3}, 0')
    a('v_and_b32 v7, 31, v0\nv_lshlrev_b32 v6, 2, v6\nv_sub_u32 v7, v7, v6')
    for b in range(8):
        a(f's_waitcnt vmcnt({12 + 3*(7-b)})')
        a(f'v_mfma_f32_32x32x16_bf16 {vr(S,16)}, {vr(K+4*b,4)}, {vr(Q+4*b,4)}, {vr(S,16) if b else 0}')
        a(f'v_mfma_f32_32x32x16_bf16 {vr(SM,16)}, {vr(KMr+4*b,4)}, {vr(Q+4*b,4)}, {vr(SM,16) if b else 0}')
    vals = [S+r for r in range(16)] + [SM+r for r in range(4)]
    prs = [(vals[2*i], vals[2*i+1]) for i in range(10)]
    for n, (x, y) in enumerate(prs): a(f'v_cvt_pk_bf16_f32 v{T+n}, v{x}, v{y}')
    for n, (x, y) in enumerate(prs): unpack(a, x, y, T+n)
    for x in vals: a(f'v_mul_f32 v{x}, {SCALE}, v{x}')
    for n, (x, y) in enumerate(prs): a(f'v_cvt_pk_bf16_f32 v{T+n}, v{x}, v{y}')
    for n, (x, y) in enumerate(prs): unpack(a, x, y, T+n)
    a('v_mov_b32 v6, 0xff800000')
    for r in range(16):
        a(f'v_cmp_le_i32 s[{24+2*(r%4)}:{25+2*(r%4)}], {(r//4)*8 + r%4}, v7')
        if r % 4 == 3:
            for k in range(4): a(f'v_cndmask_b32 v{S+r-3+k}, v6, v{S+r-3+k}, s[{24+2*k}:{25+2*k}]')
    a(f'v_max3_f32 v{T}, v{vals[0]}, v{vals[1]}, v{vals[2]}\nv_max3_f32 v{T+1}, v{vals[3]}, v{vals[4]}, v{vals[5]}')
    for n in range(6, 18, 4):
        a(f'v_max3_f32 v{T}, v{T}, v{vals[n]}, v{vals[n+1]}\nv_max3_f32 v{T+1}, v{T+1}, v{vals[n+2]}, v{vals[n+3]}')
    a(f'v_max3_f32 v{T}, v{T}, v{vals[18]}, v{vals[19]}\nv_max_f32 v{T}, v{T}, v{T+1}')
    xsum_swap(a, T, T+1, 32, 'max')
    a(f'v_mul_f32 v{T}, 0xbfb8aa3b, v{T}\ns_mov_b32 s22, {LOG2E}')
    for x in vals: a(f'v_fma_f32 v{x}, v{x}, s22, v{T}')
    for x in vals: a(f'v_exp_f32 v{x}, v{x}')
    a(f'v_add_f32 v{T}, v{vals[0]}, v{vals[1]}\nv_add_f32 v{T+1}, v{vals[2]}, v{vals[3]}')
    for n in range(4, 20, 2): a(f'v_add_f32 v{T}, v{T}, v{vals[n]}\nv_add_f32 v{T+1}, v{T+1}, v{vals[n+1]}')
    a(f'v_add_f32 v{T}, v{T}, v{T+1}')
    xsum_swap(a, T, T+1, 32)
    a(f'v_rcp_f32 v{T}, v{T}')
    for x in vals: a(f'v_mul_f32 v{x}, v{x}, v{T}')
    P = T + 4
    for n, (x, y) in enumerate(prs): a(f'v_cvt_pk_bf16_f32 v{P+n}, v{x}, v{y}')
    a(f'v_mov_b32 v{P+10}, 0\nv_mov_b32 v{P+11}, 0\ns_waitcnt vmcnt(0)')
    for k in range(3):
        for e in range(4):
            A = vr(V+8*e+4*k, 4) if k < 2 else vr(VMr+4*e, 4)
            a(f'v_mfma_f32_32x32x16_bf16 {vr(O+16*e,16)}, {A}, {vr(P+4*k,4)}, {vr(O+16*e,16) if k else 0}')
    for e in range(4):
        for h in range(2):
            b = 2*e + h
            for r in range(4): a(f'v_cvt_pk_bf16_f32 v{KMr+4*b+r}, v{O+16*e+8*h+2*r}, v{O+16*e+8*h+2*r+1}')
            a(f'buffer_store_dwordx4 {vr(KMr+4*b,4)}, v{2 if b < 4 else 3}, s[12:15], s19 offen offset:{(b%4)*1024}')

def att_kernel(a, label):
    kernel_begin(a, label); end = a.label('end')
    entry(a, 512, end)
    a('s_load_dwordx2 s[4:5], s[0:1], 112\ns_lshr_b32 s8, s2, 3\ns_and_b32 s9, s2, 7\ns_lshl_b32 s9, s9, 2\ns_add_u32 s9, s9, s3\ns_waitcnt lgkmcnt(0)')
    att_body(a, 8, 9)
    a(f's_waitcnt vmcnt(0)\n{end}:\ns_endpgm')
    kernel_desc(a, label, 208, 208)
    return (label, 512, 256, 0)
```

```python
MB = 1 << 20
H1F = 0 * MB
X1F = 4 * MB
H2F = 8 * MB
MODF = 12 * MB
RING = 13 * MB
CTL = 15 * MB
QF = 16 * MB
KF = 32 * MB
VT = 48 * MB
OF = 64 * MB
FF = 80 * MB
KM = 96 * MB
VM = 100 * MB
TS = 104 * MB
WS_BYTES = 268435456
```

```python
import sys
from asmlib import *
from layout import *
import hazard
from k_small import *
from k_gemm import *
def build(path, chain=True):
    a = Asm(); L = []
    L.append(mod_kernel(a, 'mod_kernel'))
    L.append(ln_kernel(a, 'ln1_kernel', True))
    L.append(qkv_kernel(a, 'qkv_kernel'))
    if chain:
        import k_chain
        k_chain.TIMING = 't' in chain; k_chain.PROF = 'P' in chain or 't' in chain; k_chain.PACK = 'p' not in chain; k_chain.ACK = 'a' not in chain; k_chain.OACK = 'o' not in chain; k_chain.XACK = 'x' not in chain; k_chain.EXPF = chain; k_chain.ROT = 'r' not in chain
        L.append(k_chain.chain_kernel(a, 'chain_kernel', 's' in chain))
    L.append(att_kernel(a, 'att_kernel'))
    L.append(gemm_kernel(a, 'wo_kernel', 'wo', 128, 64, 6))
    L.append(ln_kernel(a, 'ln2_kernel', False))
    L.append(gemm_kernel(a, 'ff1_kernel', 'ff1', 128, 256, 4))
    L.append(gemm_kernel(a, 'ff2_kernel', 'ff2', 128, 64, 6))
    t, n = hazard.fix(a.text())
    open(path, 'w').write(header(L) + t + '\n')
    print('nops added', n, 'bytes', len(t))
if __name__ == '__main__':
    build(sys.argv[1], sys.argv[2] if len(sys.argv) > 2 else '')
```

```python
from asmlib import *
from layout import *
from k_small import SCALE, LOG2E, unpack

C_XCD, C_FULL, C_MODE, C_T2 = 0, 1024, 1152, 1280
SLOT = 512 * 1024
R_X, R_O, R_S, R_P = 0, 65536, 131072, 393216
S_STRIDE = 1280
L_ACC, L_M, L_ROLE, L_KX, L_VX, L_STG = 0, 13824, 18432, 20480, 22528, 28672
MS = 4608
CHAIN_LDS = L_STG + 4 * 32768
OOB = 0x40000000
sRING, sWS, sW = 8, 12, 16
sX, sC, sCU, sSTEP, sSLOT, sNEXT, sRST, sBUD, sSEG, sKM, sT, sT2, sMODE = range(20, 33)
sTS = 36
TIMING = False
ACK = True
PROF = False
EXPF = ''
PACK = True
OACK = True
XACK = True
NSTEP = 64
POLL_BUDGET = 400000

def stamp(a, i):
    if TIMING: a(f's_memtime s[{sTS+2*i}:{sTS+2*i+1}]')

def roles(a, end, ngrid):
    srd_off(a, sW, 4, CTL, 65536)
    a(f's_getreg_b32 s{sX}, hwreg(HW_REG_XCC_ID, 0, 4)\ns_and_b32 s{sX}, s{sX}, 7')
    skip = a.label('rs'); nf = a.label('nf')
    a(f's_cmp_lg_u32 s3, 0\ns_cbranch_scc1 {skip}')
    a(f's_lshl_b32 s{sT}, s{sX}, 7\nv_mov_b32 v2, 0\nv_mov_b32 v4, 1\ns_mov_b64 exec, 1')
    a(f'buffer_atomic_add v4, v2, s[{sW}:{sW+3}], s{sT} offen sc0\ns_waitcnt vmcnt(0)')
    a(f'v_readfirstlane_b32 s{sC}, v4\nds_write_b32 v2, v4 offset:{L_ROLE}')
    a(f's_cmp_lg_u32 s{sC}, 31\ns_cbranch_scc1 {nf}\ns_cmp_ge_u32 s{sX}, 4\ns_cbranch_scc1 {nf}')
    a(f'v_mov_b32 v4, 1\nbuffer_atomic_add v4, v2, s[{sW}:{sW+3}], 0 offen offset:{C_FULL} sc0 sc1\ns_waitcnt vmcnt(0)')
    a(f'v_readfirstlane_b32 s{sT}, v4\ns_cmp_lg_u32 s{sT}, 3\ns_cbranch_scc1 {nf}')
    a(f'v_mov_b32 v4, 1\nv_mov_b32 v5, 0\nbuffer_atomic_cmpswap v[4:5], v2, s[{sW}:{sW+3}], 0 offen offset:{C_MODE} sc1')
    a(f'{nf}:\ns_mov_b64 exec, -1\n{skip}:')
    a(f's_waitcnt lgkmcnt(0)\ns_barrier\nv_mov_b32 v2, 0\nds_read_b32 v4, v2 offset:{L_ROLE}\ns_waitcnt lgkmcnt(0)\nv_readfirstlane_b32 s{sC}, v4')
    a(f's_mov_b32 s{sMODE}, 0')

def wait_mode(a, load, end):
    go = a.label('go'); skip = a.label('ms'); lp = a.label('mp'); got = a.label('mg'); fast = a.label('mf')
    a(f's_cmp_lg_u32 s{sMODE}, 0\ns_cbranch_scc1 {go}')
    srd_off(a, sW, 4, CTL, 65536)
    a(f's_barrier\ns_cmp_lg_u32 s3, 0\ns_cbranch_scc1 {skip}')
    a(f's_mov_b32 s{sT}, 4000\nv_mov_b32 v2, 0\ns_mov_b64 exec, 1\n{lp}:')
    a(f'buffer_load_dword v4, v2, s[{sW}:{sW+3}], 0 offen offset:{C_MODE} sc1\ns_waitcnt vmcnt(0)')
    a(f'v_readfirstlane_b32 s{sT2}, v4\ns_cmp_lg_u32 s{sT2}, 0\ns_cbranch_scc1 {got}')
    a(f's_sub_u32 s{sT}, s{sT}, 1\ns_cmp_lg_u32 s{sT}, 0\ns_cbranch_scc1 {lp}')
    a(f'v_mov_b32 v4, 2\nv_mov_b32 v5, 0\nbuffer_atomic_cmpswap v[4:5], v2, s[{sW}:{sW+3}], 0 offen offset:{C_MODE} sc0 sc1\ns_waitcnt vmcnt(0)')
    a(f'v_readfirstlane_b32 s{sT2}, v4\ns_cmp_eq_u32 s{sT2}, 0\ns_cselect_b32 s{sT2}, 2, s{sT2}')
    a(f'{got}:\nv_mov_b32 v4, s{sT2}\nv_mov_b32 v5, 1\ns_cmp_eq_u32 s{sT2}, 1\ns_cbranch_scc1 {fast}')
    a(f'buffer_atomic_add v5, v2, s[{sW}:{sW+3}], 0 offen offset:{C_T2} sc0 sc1\ns_waitcnt vmcnt(0)')
    a(f'{fast}:\nds_write_b64 v2, v[4:5] offset:{L_ROLE+8}\ns_mov_b64 exec, -1\n{skip}:')
    a(f's_waitcnt lgkmcnt(0)\ns_barrier\nv_mov_b32 v2, 0\nds_read_b64 v[4:5], v2 offset:{L_ROLE+8}\ns_waitcnt lgkmcnt(0)')
    a(f'v_readfirstlane_b32 s{sMODE}, v4\nv_readfirstlane_b32 s{sT}, v5\ns_cmp_eq_u32 s{sMODE}, 2')
    nat = a.label('nat')
    a(f's_cbranch_scc0 {nat}')
    a(f's_cmp_ge_u32 s{sT}, 128\ns_cbranch_scc1 {end}\ns_lshr_b32 s{sX}, s{sT}, 5\ns_and_b32 s{sC}, s{sT}, 31\ns_branch {load}')
    a(f'{nat}:\ns_cmp_ge_u32 s{sX}, 4\ns_cbranch_scc1 {end}\ns_cmp_ge_u32 s{sC}, 32\ns_cbranch_scc1 {end}\n{go}:')

def blockid(a, d, p):
    a(f's_lshl_b32 s{d}, s3, 2\ns_add_u32 s{d}, s{d}, {p}')
    if ROT: a(f's_add_u32 s{d}, s{d}, s{sC}\ns_and_b32 s{d}, s{d}, 15')

def load_weights(a):
    a(f's_lshl_b32 s{sCU}, s{sX}, 5\ns_add_u32 s{sCU}, s{sCU}, s{sC}')
    a('s_load_dwordx4 s[60:63], s[0:1], 16\ns_load_dwordx4 s[64:67], s[0:1], 32')
    a('v_lshrrev_b32 v4, 2, v0\nv_and_b32 v5, 3, v0\nv_lshlrev_b32 v5, 4, v5\nv_lshl_add_u32 v6, v4, 13, v5\nv_lshl_add_u32 v7, v4, 11, v5')
    a('v_bfe_u32 v8, v0, 3, 1\nv_lshlrev_b32 v8, 5, v8\nv_bfe_u32 v9, v0, 2, 1\nv_add_u32 v8, v8, v9')
    a('v_bfe_u32 v9, v0, 5, 1\nv_bfe_u32 v10, v0, 4, 1')
    a('v_lshl_add_u32 v11, v9, 3, v8\nv_lshl_add_u32 v11, v10, 2, v11\nv_lshl_add_u32 v12, v10, 4, v8\nv_lshl_add_u32 v12, v9, 2, v12')
    a(f's_lshl_b32 s{sT2}, s3, 15\ns_add_u32 s{sT2}, s{sT2}, {L_STG}')
    a(f'v_and_b32 v9, 3, v0\nv_lshlrev_b32 v9, 3, v9\nv_add_u32 v9, s{sT2}, v9\nv_lshl_add_u32 v11, v11, 6, v9\nv_lshl_add_u32 v12, v12, 6, v9')
    a('s_waitcnt lgkmcnt(0)')
    def issue(m):
        srd(a, sW, 60 + 2*m, 8*MB)
        if m < 3: a(f's_lshl_b32 s34, s{sCU}, 6'); step, v, sh = 16*8192, 6, 19
        else: a(f's_lshl_b32 s34, s{sX}, 21\ns_lshl_b32 s33, s{sC}, 6\ns_add_u32 s34, s34, s33'); step, v, sh = 16*2048, 7, 17
        a(f's_add_u32 m0, s{sT2}, {(m%2)*16384}')
        for i in range(16):
            if i % 4 == 0:
                blockid(a, sT, i // 4); a(f's_lshl_b32 s{sT}, s{sT}, {sh}\ns_add_u32 s{sT}, s{sT}, s34')
            a(f'buffer_load_dwordx4 v{v}, s[{sW}:{sW+3}], s{sT} offen lds')
            if i < 15: a(f's_add_u32 m0, m0, 1024\ns_add_u32 s{sT}, s{sT}, {step}')
    def read(m):
        for t in range(2):
            for p in range(4):
                for u in range(4):
                    row = 64*p + (16 if m < 3 else 8)*(u//2) + 2*(u % 2)
                    a(f'ds_read_b64_tr_b16 {ar(m*64+(t*4+p)*8+2*u,2)}, v{11 if m < 3 else 12} offset:{(m%2)*16384 + row*64 + 32*t}')
        a('s_waitcnt lgkmcnt(0)')
    issue(0); issue(1)
    a('s_waitcnt vmcnt(16)'); read(0); issue(2)
    a('s_waitcnt vmcnt(16)'); read(1); issue(3)
    a('s_waitcnt vmcnt(16)'); read(2)
    a('s_waitcnt vmcnt(0)'); read(3)

vIDX, vACC, vTT, vGX, vGO = 2, 5, 6, 240, 244
ROT = True
XA, D, F = 8, 24, 48
def common_setup(a):
    srd_off(a, sRING, 4, RING, 4*SLOT)
    srd_off(a, sWS, 4, KF, TS + MB - KF)
    a(f'v_and_b32 v6, 8, v0\nv_mov_b32 v{vIDX}, 0x4444\nv_mov_b32 v7, 0xeeee\nv_cmp_ne_u32 vcc, 0, v6\nv_cndmask_b32 v{vIDX}, v{vIDX}, v7, vcc')
    a('v_lshlrev_b32 v6, 4, v0')
    for p in range(4):
        blockid(a, sT2, p)
        a(f's_lshl_b32 s{sT}, s{sX}, 14\ns_lshl_b32 s{sT2}, s{sT2}, 10\ns_add_u32 s{sT}, s{sT}, s{sT2}')
        a(f'v_add_u32 v{vGX+p}, s{sT}, v6\nv_add_u32 v{vGO+p}, {R_O}, v{vGX+p}')
    a(f'v_bfe_u32 v6, v0, 4, 1\nv_mul_u32_u24 v6, 576, v6\nv_bfe_u32 v7, v0, 5, 1\nv_lshl_add_u32 v6, v7, 6, v6\nv_and_b32 v7, 15, v0\nv_lshl_add_u32 v{vACC}, v7, 2, v6\ns_mul_i32 s{sT}, s3, 1152\nv_add_u32 v{vACC}, s{sT}, v{vACC}')
    a(f's_mov_b32 s{sSTEP}, 0\ns_mov_b32 s{sSLOT}, 0\ns_mov_b32 s{sNEXT}, {SLOT}\ns_mov_b32 s{sRST}, {2*SLOT}\ns_mov_b32 s{sBUD}, {POLL_BUDGET}')
    a(f's_lshl_b32 s{sSEG}, s{sCU}, 11\ns_lshl_b32 s{sKM}, s{sCU}, 9\ns_add_u32 s{sKM}, s{sKM}, {KM-KF}')

def retry_tail(a, again, ok):
    a(f's_cbranch_vccz {ok}\ns_cmp_eq_u32 s{sBUD}, 0\ns_cbranch_scc1 {ok}\ns_sub_u32 s{sBUD}, s{sBUD}, 1\ns_branch {again}\n{ok}:')

COLD = []
def gather_mm(a, vaddr, mats, lds_off, shadow=None, mid=None, st=None, defer_last=False):
    nt = 2 * len(mats)
    def ld(p): return f'buffer_load_dwordx4 {vr(XA+4*p,4)}, v{vaddr+p}, s[{sRING}:{sRING+3}], s{sSLOT} offen sc1'
    def mm(mi, t, p): return f'v_smfmac_f32_16x16x64_bf16 {vr(D+8*mi+4*t,4)}, {vr(XA+4*p,4)}, {ar(mats[mi]*64+(t*4+p)*8,8)}, v{vIDX}'
    for p in range(4): a(ld(p))
    for r in range(4*nt): a(f'v_mov_b32 v{D+r}, 0')
    if shadow: shadow()
    nu = min(len(mats), 2)
    for p in range(4):
        again = a.label('ga'); ok = a.label('go'); rt = a.label('gr')
        x = XA + 4*p
        a(f'{again}:\ns_waitcnt vmcnt({3-p})')
        a(f'v_max3_u32 v{vTT}, v{x}, v{x+1}, v{x+2}\nv_max_u32 v{vTT}, v{vTT}, v{x+3}\nv_cmp_eq_u32 vcc, -1, v{vTT}')
        a(f's_cbranch_vccnz {rt}\n{ok}:')
        COLD.append(f'{rt}:\ns_cmp_eq_u32 s{sBUD}, 0\ns_cbranch_scc1 {ok}\ns_sub_u32 s{sBUD}, s{sBUD}, 1\n' +
                    '\n'.join(ld(q) for q in range(p, 4)) + f'\ns_branch {again}')
        if p == 3 and st is not None: stamp(a, st)
        for mi in range(nu):
            for t in range(2): a(mm(mi, t, p))
    def fold(mi):
        d = D + 8*mi
        ops = [f'v_permlane32_swap_b32 v{d+r}, v{d+4+r}' for r in range(4)]
        ops += [f'v_add_f32 v{d+r}, v{d+r}, v{d+4+r}' for r in range(4)]
        ops += [f'ds_write_b32 v{vACC}, v{d+r} offset:{lds_off + mi*MS + r*144}' for r in range(4)]
        return ops
    pend = sum((fold(mi) for mi in range(nu)), [])
    for o in pend: a(o)
    if len(mats) == 3:
        mid()
        pend = [mm(2, t, p) for p in range(4) for t in range(2)] + fold(2)
        if defer_last: return pend
        for o in pend: a(o)

def cold(a):
    for c in COLD: a(c)
    COLD.clear()

def pkadd(a, d, s, n):
    for r in range(0, n, 2): a(f'v_pk_add_f32 {vr(d+r,2)}, {vr(d+r,2)}, {vr(s+r,2)}')

def step_end(a, loop):
    a(f's_add_u32 s{sSTEP}, s{sSTEP}, 1\ns_mov_b32 s{sSLOT}, s{sNEXT}\ns_mov_b32 s{sNEXT}, s{sRST}')
    a(f's_add_u32 s{sRST}, s{sRST}, {SLOT}\ns_and_b32 s{sRST}, s{sRST}, {4*SLOT-1}\ns_branch {loop}')
    cold(a)

def ts_flush(a, n, w, i0=0):
    if not TIMING: return
    a('s_waitcnt lgkmcnt(0)')
    for i in range(n): a(f'v_writelane_b32 v250, s{sTS+2*(i+i0)}, {i}')
    a(f's_lshl_b32 s{sT}, s{sCU}, 8\ns_add_u32 s{sT}, s{sT}, s{sSTEP}\ns_lshl_b32 s{sT}, s{sT}, 2\ns_add_u32 s{sT}, s{sT}, {w*64*4}\ns_lshl_b32 s{sT}, s{sT}, 3\ns_add_u32 s{sT}, s{sT}, {TS-KF}')
    a(f'v_lshlrev_b32 v251, 2, v0\ns_mov_b64 exec, 0xff\nbuffer_store_dword v250, v251, s[{sWS}:{sWS+3}], s{sT} offen\ns_mov_b64 exec, -1')

def wave0(a, sc, done):
    KX, VX, QK, QB, S, G, GM, VF, VM0, VM1, PB, PM, O = 64, 72, 176, 88, 92, 104, 120, 208, 128, 132, 136, 140, 144
    vQK, vKX, vVX, vSst, vSm, vSld, vSml, vOst, T = range(152, 161)
    vVr = 224
    R = f's[{sRING}:{sRING+3}]'
    a(f'v_and_b32 v{T}, 15, v0\nv_lshrrev_b32 v{T+1}, 4, v0\nv_bfe_u32 v{T+2}, v0, 5, 1\nv_bfe_u32 v{T+3}, v0, 4, 1')
    a(f'v_and_b32 v{T+4}, 7, v0\nv_mul_u32_u24 v{vQK}, 144, v{T+4}\nv_bfe_u32 v{T+4}, v0, 3, 1\nv_mul_u32_u24 v{T+4}, {MS}, v{T+4}\nv_add_u32 v{vQK}, v{vQK}, v{T+4}\nv_lshl_add_u32 v{vQK}, v{T+2}, 6, v{vQK}\nv_lshl_add_u32 v{vQK}, v{T+3}, 4, v{vQK}')
    a(f'v_and_b32 v{T+4}, 7, v0\nv_and_b32 v{T+5}, 8, v0\nv_lshl_add_u32 v{vKX}, v{T+5}, 1, v{T+4}')
    a(f'v_lshl_add_u32 v{vKX}, v{T+3}, 5, v{vKX}\nv_lshlrev_b32 v{vKX}, 4, v{vKX}\nv_lshl_add_u32 v{vKX}, v{T+2}, 10, v{vKX}')
    a(f'v_lshl_add_u32 v{vVX}, v{T+3}, 5, v{T}\nv_lshlrev_b32 v{vVX}, 4, v{vVX}\nv_lshl_add_u32 v{vVX}, v{T+2}, 10, v{vVX}')
    a(f's_mul_i32 s{sT}, s{sCU}, {S_STRIDE}\ns_add_u32 s{sT}, s{sT}, {R_S}\ns_and_b32 s{sT2}, s{sCU}, 0x7c\ns_mul_i32 s{sT2}, s{sT2}, {S_STRIDE}\ns_add_u32 s{sT2}, s{sT2}, {R_S}')
    a(f'v_lshlrev_b32 v{T+6}, 4, v{T+4}\nv_lshl_add_u32 v{T+7}, v{T+1}, 7, v{T+6}')
    a(f'v_add_u32 v{vSst}, s{sT}, v{T+7}\nv_add_u32 v{vSm}, 768, v{vSst}\nv_mov_b32 v{T+8}, {OOB}')
    a(f'v_cmp_ne_u32 vcc, 0, v{T+5}\nv_cndmask_b32 v{vSst}, v{vSst}, v{T+8}, vcc\nv_cndmask_b32 v{vSm}, v{vSm}, v{T+8}, vcc')
    a(f'v_cmp_eq_u32 vcc, 0, v{T+2}\nv_cndmask_b32 v{vSm}, v{vSm}, v{T+8}, vcc')
    a(f'v_lshl_add_u32 v{vSld}, v{T+5}, 6, v{T+7}\nv_add_u32 v{vSld}, s{sT2}, v{vSld}')
    a(f'v_lshl_add_u32 v{vSml}, v{T+2}, 7, v{T+6}\nv_lshl_add_u32 v{vSml}, v{T+3}, 3, v{vSml}\nv_lshrrev_b32 v{T+9}, 1, v{T+5}')
    a(f'v_add_u32 v{vSml}, v{vSml}, v{T+9}\nv_add_u32 v{vSml}, s{sT2}, v{vSml}\nv_add_u32 v{vSml}, 1024, v{vSml}')
    a(f'v_mul_u32_u24 v{vVr}, 288, v{T+1}\nv_lshl_add_u32 v{vVr}, v{T}, 2, v{vVr}\nv_add_u32 v{vVr}, {L_ACC+2*MS}, v{vVr}')
    for w in range(1, 4): a(f'v_add_u32 v{vVr+w}, {1152*w}, v{vVr}')
    a(f's_lshr_b32 s{sT}, s{sC}, 1\ns_lshl_b32 s{sT}, s{sT}, 10\ns_and_b32 s{sT2}, s{sC}, 1\ns_lshl_b32 s{sT2}, s{sT2}, 7\ns_add_u32 s{sT}, s{sT}, s{sT2}')
    a(f's_lshl_b32 s{sT2}, s{sX}, 14\ns_add_u32 s{sT}, s{sT}, s{sT2}\ns_add_u32 s{sT}, s{sT}, {R_O}')
    a(f'v_lshl_add_u32 v{vOst}, v{T+1}, 8, v{T+6}\nv_add_u32 v{vOst}, s{sT}, v{vOst}\nv_cmp_ne_u32 vcc, 0, v{T+5}\nv_cndmask_b32 v{vOst}, v{vOst}, v{T+8}, vcc')
    for r in (VM0+1, VM0+2, VM0+3, VM1+1, VM1+2, VM1+3, PM+1, PM+2, PM+3): a(f'v_mov_b32 v{r}, 0')
    a(f's_mov_b32 s34, {LOG2E}\ns_mov_b32 s35, {SCALE}\ns_barrier')
    loop = a.label('w0')
    a(f'{loop}:')
    stamp(a, 0)
    def frags():
        for t in range(2):
            a(f'ds_read_b128 {vr(KX+4*t,4)}, v{vKX} offset:{L_KX+128*t}\nds_read_b128 {vr(VX+4*t,4)}, v{vVX} offset:{L_VX+256*t}')
    def b1():
        a('s_waitcnt lgkmcnt(0)\ns_barrier')
        stamp(a, 2)
        if TIMING: a(f's_mov_b32 s33, s{sBUD}')
        for w in range(4):
            a(f'ds_read_b128 {vr(QK+8*w,4)}, v{vQK} offset:{L_ACC+1152*w}\nds_read_b128 {vr(QK+8*w+4,4)}, v{vQK} offset:{L_ACC+1152*w+32}')
    vfold = gather_mm(a, vGX, [0, 1, 2], L_ACC, frags, b1, 1, True)
    a('s_waitcnt lgkmcnt(4)' if not TIMING else 's_waitcnt lgkmcnt(0)')
    pkadd(a, QK, QK+8, 8)
    a('s_waitcnt lgkmcnt(0)')
    pkadd(a, QK+16, QK+24, 8); pkadd(a, QK, QK+16, 8)
    for r in range(4): a(f'v_cvt_pk_bf16_f32 v{QB+r}, v{QK+2*r}, v{QK+2*r+1}')
    a(f'v_mfma_f32_16x16x32_bf16 {vr(S,4)}, {vr(KX,4)}, {vr(QB,4)}, 0')
    a(f'v_mfma_f32_16x16x32_bf16 {vr(S+4,4)}, {vr(KX+4,4)}, {vr(QB,4)}, 0')
    a(f'v_mfma_f32_16x16x32_bf16 {vr(S+8,4)}, {vr(QB,4)}, {vr(QB,4)}, 0')
    last = a.label('last')
    COLD.append(f'{last}:\n' + '\n'.join(vfold) + f'\ns_branch {done}')
    a(f's_cmp_eq_u32 s{sSTEP}, {NSTEP-1}\ns_cbranch_scc1 {last}')
    a(f'buffer_store_dwordx4 {vr(S,4)}, v{vSst}, {R}, s{sSLOT} offen{sc}')
    a(f'buffer_store_dwordx4 {vr(S+4,4)}, v{vSst}, {R}, s{sSLOT} offen offset:512{sc}')
    a(f'buffer_store_dwordx4 {vr(S+8,4)}, v{vSm}, {R}, s{sSLOT} offen{sc}')
    stamp(a, 3)
    for o in vfold: a(o)
    def sloads():
        for i in range(4):
            a(f'buffer_load_dwordx4 {vr(G+4*i,4)}, v{vSld}, {R}, s{sSLOT} offen offset:{S_STRIDE*i} sc1')
            a(f'buffer_load_dword v{GM+i}, v{vSml}, {R}, s{sSLOT} offen offset:{S_STRIDE*i} sc1')
    stamp(a, 8)
    if ACK: a('s_waitcnt vmcnt(0)')
    stamp(a, 9)
    if TIMING: a(f's_mov_b32 s33, s{sBUD}')
    sloads()
    a('s_waitcnt lgkmcnt(0)\ns_barrier')
    stamp(a, 10)
    for w in range(4):
        a(f'ds_read2_b32 {vr(VF+4*w,2)}, v{vVr+w} offset1:36\nds_read2_b32 {vr(VF+4*w+2,2)}, v{vVr+w} offset0:16 offset1:52')
    a(f'v_xor_b32 v{vKX}, 4096, v{vKX}\nv_xor_b32 v{vVX}, 4096, v{vVX}')
    a('s_waitcnt lgkmcnt(0)')
    pkadd(a, VF, VF+4, 4); pkadd(a, VF+8, VF+12, 4); pkadd(a, VF, VF+8, 4)
    a(f'v_cvt_pk_bf16_f32 v{VM0}, v{VF}, v{VF+1}\nv_cvt_pk_bf16_f32 v{VM1}, v{VF+2}, v{VF+3}')
    again = a.label('s'); ok = a.label('so'); chk = a.label('sc')
    a(f's_branch {chk}\n{again}:')
    sloads()
    a(f'{chk}:')
    a('s_waitcnt vmcnt(4)')
    a(f'v_pk_add_f32 {vr(G,2)}, {vr(G,2)}, {vr(G+4,2)}\nv_pk_add_f32 {vr(G+2,2)}, {vr(G+2,2)}, {vr(G+6,2)}\nv_add_f32 v{GM}, v{GM}, v{GM+1}')
    a('s_waitcnt vmcnt(0)')
    a(f'v_pk_add_f32 {vr(G+8,2)}, {vr(G+8,2)}, {vr(G+12,2)}\nv_pk_add_f32 {vr(G+10,2)}, {vr(G+10,2)}, {vr(G+14,2)}\nv_add_f32 v{GM+2}, v{GM+2}, v{GM+3}')
    a(f'v_pk_add_f32 {vr(G,2)}, {vr(G,2)}, {vr(G+8,2)}\nv_pk_add_f32 {vr(G+2,2)}, {vr(G+2,2)}, {vr(G+10,2)}\nv_add_f32 v{G+4}, v{GM}, v{GM+2}')
    a(f'v_cmp_u_f32 s[60:61], v{G}, v{G+1}\nv_cmp_u_f32 s[62:63], v{G+2}, v{G+3}\nv_cmp_u_f32 vcc, v{G+4}, v{G+4}')
    a(f'v_cvt_pk_bf16_f32 v{G+8}, v{G}, v{G+1}\nv_cvt_pk_bf16_f32 v{G+9}, v{G+2}, v{G+3}\nv_cvt_pk_bf16_f32 v{G+10}, v{G+4}, v{G+4}')
    a('s_or_b64 s[60:61], s[60:61], s[62:63]\ns_or_b64 vcc, vcc, s[60:61]')
    retry_tail(a, again, ok)
    stamp(a, 4)
    if TIMING: a(f's_sub_u32 s{sTS+22}, s33, s{sBUD}')
    unpack(a, G, G+1, G+8); unpack(a, G+2, G+3, G+9); a(f'v_lshlrev_b32 v{G+4}, 16, v{G+10}')
    for r in range(5): a(f'v_mul_f32 v{G+r}, s35, v{G+r}')
    a(f'v_cvt_pk_bf16_f32 v{G+8}, v{G}, v{G+1}\nv_cvt_pk_bf16_f32 v{G+9}, v{G+2}, v{G+3}\nv_cvt_pk_bf16_f32 v{G+10}, v{G+4}, v{G+4}')
    unpack(a, G, G+1, G+8); unpack(a, G+2, G+3, G+9); a(f'v_lshlrev_b32 v{G+4}, 16, v{G+10}')
    m, t = G+8, G+9
    a(f'v_max3_f32 v{m}, v{G}, v{G+1}, v{G+2}\nv_max3_f32 v{m}, v{m}, v{G+3}, v{G+4}')
    a(f'v_max_f32_dpp v{m}, v{m}, v{m} row_ror:8 row_mask:0xf bank_mask:0xf')
    for w in (16, 32): a(f'v_mov_b32 v{t}, v{m}\nv_permlane{w}_swap_b32 v{m}, v{t}\nv_max_f32 v{m}, v{m}, v{t}')
    a(f'v_mul_f32 v{m}, 0xbfb8aa3b, v{m}')
    for r in range(5): a(f'v_fma_f32 v{G+r}, v{G+r}, s34, v{m}')
    for r in range(5): a(f'v_exp_f32 v{G+r}, v{G+r}')
    a(f'v_cvt_pk_bf16_f32 v{PB}, v{G}, v{G+1}\nv_cvt_pk_bf16_f32 v{PB+1}, v{G+2}, v{G+3}')
    a(f'v_mov_b32_dpp v{t}, v{G+4} row_ror:8 row_mask:0xf bank_mask:0xf')
    a(f'v_mov_b32_dpp v{PB+2}, v{PB} row_ror:8 row_mask:0xf bank_mask:0xf\nv_mov_b32_dpp v{PB+3}, v{PB+1} row_ror:8 row_mask:0xf bank_mask:0xf')
    a(f'v_cvt_pk_bf16_f32 v{PM}, v{G+4}, v{t}')
    a(f'v_add_f32 v{G}, v{G}, v{G+1}\nv_add_f32 v{G+2}, v{G+2}, v{G+3}')
    a(f'v_mfma_f32_16x16x32_bf16 {vr(O,4)}, {vr(VX,4)}, {vr(PB,4)}, 0')
    a(f'v_add_f32 v{G}, v{G}, v{G+2}\nv_add_f32 v{m}, v{G}, v{G+4}')
    a(f'v_mfma_f32_16x16x32_bf16 {vr(O+4,4)}, {vr(VX+4,4)}, {vr(PB,4)}, 0')
    a(f'v_add_f32_dpp v{m}, v{m}, v{m} row_ror:8 row_mask:0xf bank_mask:0xf')
    a(f'v_mfma_f32_16x16x32_bf16 {vr(O,4)}, {vr(VM0,4)}, {vr(PM,4)}, {vr(O,4)}')
    a(f'v_mov_b32 v{t}, v{m}\nv_permlane16_swap_b32 v{m}, v{t}\nv_add_f32 v{m}, v{m}, v{t}')
    a(f'v_mfma_f32_16x16x32_bf16 {vr(O+4,4)}, {vr(VM1,4)}, {vr(PM,4)}, {vr(O+4,4)}')
    a(f'v_mov_b32 v{t}, v{m}\nv_permlane32_swap_b32 v{m}, v{t}\nv_add_f32 v{m}, v{m}, v{t}\nv_rcp_f32 v{m}, v{m}')
    for r in range(8): a(f'v_mul_f32 v{O+r}, v{O+r}, v{m}')
    for r in range(4): a(f'v_cvt_pk_bf16_f32 v{G+r}, v{O+2*r}, v{O+2*r+1}')
    a(f'buffer_store_dwordx4 {vr(G,4)}, v{vOst}, {R}, s{sSLOT} offen{sc}')
    stamp(a, 5)
    if OACK: a('s_waitcnt vmcnt(0)')
    a('s_barrier')
    gather_mm(a, vGO, [3], L_M, None, None, 6)
    a('s_waitcnt lgkmcnt(0)\ns_barrier')
    stamp(a, 7)
    a('s_barrier')
    ts_flush(a, 8, 0); ts_flush(a, 4, 2, 8)
    a('s_barrier')
    step_end(a, loop)

def helper(a, w, sc, done):
    R = f's[{sRING}:{sRING+3}]'; W = f's[{sWS}:{sWS+3}]'
    A0, A1, A2, A3, A4, T = 152, 153, 154, 155, 156, 160
    B = 64
    a(f'v_and_b32 v{T}, 15, v0\nv_lshrrev_b32 v{T+1}, 4, v0\nv_bfe_u32 v{T+2}, v0, 5, 1\nv_bfe_u32 v{T+3}, v0, 4, 1\nv_bfe_u32 v{T+4}, v0, 1, 3\nv_and_b32 v{T+5}, 1, v0')
    if w == 1:
        a(f'v_and_b32 v{T+6}, 7, v0\nv_mul_u32_u24 v{A0}, 144, v{T+6}\nv_lshl_add_u32 v{A0}, v{T+2}, 6, v{A0}\nv_lshl_add_u32 v{A0}, v{T+3}, 4, v{A0}')
        a(f'v_lshlrev_b32 v{A1}, 4, v{T+6}\nv_lshl_add_u32 v{A1}, v{T+1}, 7, v{A1}\nv_mov_b32 v{T+7}, {OOB}\nv_cmp_lt_u32 vcc, 7, v{T}\nv_cndmask_b32 v{A1}, v{A1}, v{T+7}, vcc')
        a(f'v_mul_u32_u24 v{A2}, 576, v{T+2}\nv_and_b32 v{T+6}, 31, v0\nv_lshl_add_u32 v{A2}, v{T+6}, 2, v{A2}\nv_add_u32 v{A2}, {L_ACC+2*MS}, v{A2}')
        for k in range(4): a(f'v_add_u32 v{224+k}, {1152*k}, v{A2}')
        a(f'v_mul_u32_u24 v{A3}, 144, v{T+4}\nv_lshl_add_u32 v{A3}, v{T+1}, 5, v{A3}\nv_lshl_add_u32 v{A3}, v{T+5}, 4, v{A3}')
        a(f's_lshl_b32 s{sT}, s{sC}, 2\ns_add_u32 s{sT}, s{sT}, s{sX}\ns_lshl_b32 s{sT}, s{sT}, 10\ns_add_u32 s{sT}, s{sT}, {R_P}')
        a(f'v_lshlrev_b32 v236, 4, v0\nv_add_u32 v236, s{sT}, v236\nv_lshlrev_b32 v{T+8}, 3, v0')
        a(f's_lshr_b32 s{sT}, s{sC}, 1\ns_lshl_b32 s{sT}, s{sT}, 10\ns_and_b32 s{sT2}, s{sC}, 1\ns_lshl_b32 s{sT2}, s{sT2}, 7\ns_add_u32 s{sT}, s{sT}, s{sT2}')
        a(f's_lshl_b32 s{sT2}, s{sX}, 14\ns_add_u32 s{sT}, s{sT}, s{sT2}')
        a(f'v_lshlrev_b32 v237, 3, v{T}\nv_lshl_add_u32 v237, v{T+1}, 8, v237\nv_add_u32 v237, s{sT}, v237\nv_add_u32 v238, {R_O}, v237')
        a(f's_mul_i32 s{sT}, s{sCU}, {S_STRIDE}\ns_add_u32 s{sT}, s{sT}, {R_S}\nv_lshlrev_b32 v239, 4, v0\nv_add_u32 v239, s{sT}, v239')
        a(f'v_lshlrev_b32 v{A2}, 2, v0\nv_add_u32 v{A2}, s{sT}, v{A2}')
        for r in range(4): a(f'v_mov_b32 v{232+r}, -1')
    if w == 2:
        a(f's_lshr_b32 s{sT}, s{sC}, 1\ns_lshl_b32 s{sT}, s{sT}, 10\ns_and_b32 s{sT2}, s{sC}, 1\ns_lshl_b32 s{sT2}, s{sT2}, 7\ns_add_u32 s{sT}, s{sT}, s{sT2}')
        a(f's_lshl_b32 s{sT2}, s{sX}, 14\ns_add_u32 s{sT}, s{sT}, s{sT2}')
        a(f'v_lshlrev_b32 v{A0}, 3, v{T}\nv_lshl_add_u32 v{A0}, v{T+1}, 8, v{A0}\nv_add_u32 v{A0}, s{sT}, v{A0}\nv_add_u32 v{A4}, {R_O}, v{A0}')
        a(f's_lshl_b32 s{sT}, s{sC}, 12\ns_add_u32 s{sT}, s{sT}, {R_P}\nv_lshlrev_b32 v{A1}, 4, v0\nv_add_u32 v{A1}, s{sT}, v{A1}')
        a(f's_lshl_b32 s{sT}, s{sX}, 10\nv_add_u32 v{A3}, s{sT}, v{A1}')
        a(f's_mul_i32 s{sT}, s{sCU}, {S_STRIDE}\ns_add_u32 s{sT}, s{sT}, {R_S}\nv_lshlrev_b32 v{A2}, 4, v0\nv_add_u32 v{A2}, s{sT}, v{A2}')
        a(f'v_lshlrev_b32 v{T+6}, 2, v0\nv_add_u32 v{T+6}, s{sT}, v{T+6}')
        a(f'v_mul_u32_u24 v{T+8}, 144, v{T+4}\nv_lshl_add_u32 v{T+8}, v{T+1}, 5, v{T+8}\nv_lshl_add_u32 v{T+8}, v{T+5}, 4, v{T+8}')
        for r in range(4): a(f'v_mov_b32 v{B+32+r}, -1')
        a('s_load_dwordx2 s[60:61], s[0:1], 8\ns_waitcnt lgkmcnt(0)')
        srd(a, sW, 60, 16384)
        a(f'v_lshlrev_b32 v{T+7}, 11, v{T+4}\nv_lshl_add_u32 v{T+7}, v{T+1}, 4, v{T+7}\nv_lshl_add_u32 v{T+7}, v{T+5}, 3, v{T+7}\ns_lshl_b32 s{sT}, s{sC}, 6')
        a(f'buffer_load_dwordx2 {vr(B,2)}, v{T+7}, s[{sW}:{sW+3}], s{sT} offen\ns_waitcnt vmcnt(0)')
        a(f'buffer_store_dwordx2 {vr(B,2)}, v{A0}, {R}, 0 offen{sc}')
    def kv_dma():
        a(f's_mov_b32 m0, s33\ns_add_u32 s{sT}, s{sSEG}, {VT-KF}')
        a(f'buffer_load_dwordx4 v{A0}, {W}, s{sSEG} offen lds\nbuffer_load_dwordx4 v{A0}, {W}, s{sSEG} offen offset:1024 lds')
        a(f's_add_u32 m0, s33, 2048\ns_xor_b32 s33, s33, {L_KX ^ (L_KX+4096)}')
        a(f'buffer_load_dwordx4 v{A0}, {W}, s{sT} offen lds\nbuffer_load_dwordx4 v{A0}, {W}, s{sT} offen offset:1024 lds')
        if 'n' not in EXPF: a(f's_add_u32 s{sSEG}, s{sSEG}, {256*1024}')
    def l2_prefetch():
        for base in (60, 62):
            for k in range(32): a(f's_load_dword s64, s[{base}:{base+1}], {64*k}')
            a(f's_add_u32 s{base}, s{base}, {256*1024}\ns_addc_u32 s{base+1}, s{base+1}, 0')
    def zero(off, n):
        for k in range(-(-n // 1024)):
            if n - k*1024 < 1024: a(f's_mov_b64 exec, {hex((1 << ((n - k*1024)//16)) - 1)}')
            a(f'ds_write_b128 v{A0}, {vr(B,4)} offset:{off+1024*k}')
        a('s_mov_b64 exec, -1')
    if w == 3:
        a(f'v_lshlrev_b32 v{A0}, 4, v0')
        for r in range(4): a(f'v_mov_b32 v{B+r}, 0')
        a(f's_add_u32 s60, s{sWS}, s{sSEG}\ns_addc_u32 s61, s{sWS+1}, 0\ns_add_u32 s60, s60, {2*256*1024}\ns_addc_u32 s61, s61, 0')
        a(f's_add_u32 s62, s60, {VT-KF}\ns_addc_u32 s63, s61, 0')
        a(f's_mov_b32 s33, {L_KX}'); kv_dma(); kv_dma()
        if 'f' in EXPF: l2_prefetch()
        a('s_waitcnt vmcnt(0)')
    a('s_barrier')
    loop = a.label(f'w{w}')
    a(f'{loop}:')
    gather_mm(a, vGX, [0, 1, 2], L_ACC, None, lambda: a('s_waitcnt lgkmcnt(0)\ns_barrier'))
    if w != 1: a(f's_cmp_eq_u32 s{sSTEP}, {NSTEP-1}\ns_cbranch_scc1 {done}')
    a('s_waitcnt lgkmcnt(0)\ns_barrier')
    if w == 1:
        for k in range(4):
            b = B + 12*k
            a(f'ds_read_b128 {vr(b,4)}, v{A0} offset:{L_ACC+MS+1152*k}\nds_read_b128 {vr(b+4,4)}, v{A0} offset:{L_ACC+MS+1152*k+32}')
            a(f'ds_read2_b32 {vr(b+8,2)}, v{224+k} offset1:36\nds_read2_b32 {vr(b+10,2)}, v{224+k} offset0:72 offset1:108')
        a('s_waitcnt lgkmcnt(0)')
        pkadd(a, B, B+12, 12); pkadd(a, B+24, B+36, 12); pkadd(a, B, B+24, 12)
        for r in range(6): a(f'v_cvt_pk_bf16_f32 v{B+12+r}, v{B+2*r}, v{B+2*r+1}')
        kvpub = (f's_add_u32 s{sT}, s{sKM}, {VM-KM}\nbuffer_store_dwordx4 {vr(B+12,4)}, v{A1}, {W}, s{sKM} offen sc1\n'
                 f'buffer_store_dwordx2 {vr(B+16,2)}, v{T+8}, {W}, s{sT} offen sc1\ns_add_u32 s{sKM}, s{sKM}, 65536')
        last = a.label('last')
        COLD.append(f'{last}:\n{kvpub}\ns_branch {done}2')
        a(f's_cmp_eq_u32 s{sSTEP}, {NSTEP-1}\ns_cbranch_scc1 {last}')
    a('s_barrier')
    gather_mm(a, vGO, [3], L_M)
    a('s_waitcnt lgkmcnt(0)\ns_barrier')
    if w != 2: a('s_barrier')
    if w == 3:
        kv_dma()
        if 'f' in EXPF: l2_prefetch()
    if w == 1:
        Z = 232
        a(f'buffer_store_dwordx4 {vr(Z,4)}, v{Z+4}, {R}, s{sRST} offen sc1')
        if 'k' not in EXPF: a(kvpub)
        a(f'buffer_store_dwordx2 {vr(Z,2)}, v{Z+5}, {R}, s{sRST} offen{sc}\nbuffer_store_dwordx2 {vr(Z,2)}, v{Z+6}, {R}, s{sRST} offen{sc}')
        a(f'buffer_store_dwordx4 {vr(Z,4)}, v{Z+7}, {R}, s{sRST} offen{sc}\nbuffer_store_dword v{Z}, v{A2}, {R}, s{sRST} offen offset:1024{sc}')
        a('s_waitcnt vmcnt(0)')
    if w == 2:
        for k in range(4): a(f'ds_read_b128 {vr(B+4*k,4)}, v{T+8} offset:{L_M+1152*k}')
        a('s_waitcnt lgkmcnt(2)'); pkadd(a, B, B+4, 4); a('s_waitcnt lgkmcnt(0)'); pkadd(a, B+8, B+12, 4); pkadd(a, B, B+8, 4)
        a(f'buffer_store_dwordx4 {vr(B,4)}, v{A3}, {R}, s{sSLOT} offen sc1\ns_barrier')
        stamp(a, 0)
        if PACK: a('s_waitcnt vmcnt(0)')
        stamp(a, 2)
        if TIMING: a(f's_mov_b32 s33, s{sBUD}')
        again = a.label('p'); ok = a.label('po')
        a(f'{again}:')
        for i in range(4): a(f'buffer_load_dwordx4 {vr(B+4*i,4)}, v{A1}, {R}, s{sSLOT} offen offset:{1024*i} sc1')
        a('s_waitcnt vmcnt(2)')
        a(f'v_pk_add_f32 {vr(B,2)}, {vr(B,2)}, {vr(B+4,2)}\nv_pk_add_f32 {vr(B+2,2)}, {vr(B+2,2)}, {vr(B+6,2)}\ns_waitcnt vmcnt(0)')
        a(f'v_pk_add_f32 {vr(B+8,2)}, {vr(B+8,2)}, {vr(B+12,2)}\nv_pk_add_f32 {vr(B+10,2)}, {vr(B+10,2)}, {vr(B+14,2)}')
        a(f'v_pk_add_f32 {vr(B,2)}, {vr(B,2)}, {vr(B+8,2)}\nv_pk_add_f32 {vr(B+2,2)}, {vr(B+2,2)}, {vr(B+10,2)}')
        a(f'v_cmp_u_f32 s[60:61], v{B}, v{B+1}\nv_cmp_u_f32 vcc, v{B+2}, v{B+3}')
        a(f'v_cvt_pk_bf16_f32 v{B+4}, v{B}, v{B+1}\nv_cvt_pk_bf16_f32 v{B+5}, v{B+2}, v{B+3}\ns_or_b64 vcc, vcc, s[60:61]')
        retry_tail(a, again, ok)
        a(f'buffer_store_dwordx2 {vr(B+4,2)}, v{A0}, {R}, s{sNEXT} offen{sc}')
        stamp(a, 1)
        if XACK: a('s_waitcnt vmcnt(0)')
        stamp(a, 3)
        if TIMING: a(f's_mov_b32 s{sTS+8}, s{sBUD}')
        if TIMING: a(f's_sub_u32 s{sTS+10}, s33, s{sBUD}')
        ts_flush(a, 6, 1)
    a('s_barrier')
    step_end(a, loop)

def chain_body(a, fin):
    common_setup(a)
    safe = a.label('safe')
    a(f's_cmp_eq_u32 s{sMODE}, 2\ns_cbranch_scc1 {safe}')
    for sc in ('', ' sc1'):
        if sc: a(f'{safe}:')
        done = a.label('done'); lw = [a.label('wv') for _ in range(4)]
        for w in range(1, 4): a(f's_cmp_eq_u32 s3, {w}\ns_cbranch_scc1 {lw[w]}')
        wave0(a, sc, done)
        for w in range(1, 4):
            a(f'{lw[w]}:'); helper(a, w, sc, done)
        a(f'{done}:\ns_waitcnt lgkmcnt(0)\ns_barrier\n{done}2:\ns_branch {fin}')

def chain_kernel(a, label, force_safe=False):
    kernel_begin(a, label); end = a.label('end'); load = a.label('load'); wm = a.label('wm')
    a(f's_cmp_ge_u32 s2, 256\ns_cbranch_scc1 {end}')
    a('v_lshrrev_b32 v1, 6, v0\nv_readfirstlane_b32 s3, v1\nv_and_b32 v0, 63, v0')
    a('s_load_dwordx2 s[4:5], s[0:1], 112\ns_waitcnt lgkmcnt(0)')
    if PROF: a('s_memrealtime s[70:71]\ns_memtime s[78:79]')
    roles(a, end, 256)
    a(f's_cmp_ge_u32 s{sX}, 4\ns_cbranch_scc1 {wm}\ns_cmp_ge_u32 s{sC}, 32\ns_cbranch_scc1 {wm}\n{load}:')
    load_weights(a)
    if PROF: a('s_memrealtime s[72:73]')
    a(f'{wm}:')
    wait_mode(a, load, end)
    if PROF: a('s_memrealtime s[74:75]')
    if force_safe: a(f's_mov_b32 s{sMODE}, 2')
    fin = a.label('fin')
    chain_body(a, fin)
    a(f'{fin}:')
    if PROF:
        a('s_memrealtime s[76:77]\ns_memtime s[80:81]\ns_waitcnt lgkmcnt(0)')
        for i in range(6): a(f'v_writelane_b32 v250, s{70+2*i}, {i}')
        a(f's_lshl_b32 s{sT}, s{sCU}, 13\ns_add_u32 s{sT}, s{sT}, {TS-KF+3*2048}\nv_lshlrev_b32 v251, 2, v0\ns_mov_b64 exec, 0xff')
        a(f'buffer_store_dword v250, v251, s[{sWS}:{sWS+3}], s{sT} offen')
    a(f'{end}:\ns_waitcnt vmcnt(0)\ns_endpgm')
    kernel_desc(a, label, 512, 256)
    return (label, 256, 256, CHAIN_LDS)
```

```python
from asmlib import *

S_ASRD, S_WSRD = 40, 44
S_AOFF, S_WOFF, S_CNT, S_STG_RD, S_STG_WR, S_T0, S_WSTEP8, S_WSTEP, S_LDSW, S_T1, S_NREM = range(48, 59)

TIMING = False
EXP = {'split': 4}
class Gemm:
    def __init__(self, TM, TN, S, vtype=False, vbase=0, asc='', osc='', deep=False):
        self.deep = deep
        self.asc, self.osc = asc, osc
        self.TM, self.TN, self.S, self.vtype = TM, TN, S, vtype
        self.mt, self.nt = TM // 64, TN // 64
        self.WM = self.WN = 2
        self.RB = TN * 2
        self.abytes = TM * 64
        self.wbytes = 32 * self.RB
        self.stage = self.abytes + self.wbytes
        self.lds = self.stage * S
        self.na = self.abytes // 4096
        self.nw = self.wbytes // 4096
        self.nd = self.na + self.nw
        v = vbase
        ns = 4 if deep else 2
        self.vA = [v + 4 * self.mt * k for k in range(ns)]; v += 4 * ns * self.mt
        self.vW = [v + 4 * self.nt * k for k in range(ns)]; v += 4 * ns * self.nt
        self.vAr0 = v; v += 1
        self.vWr0 = v; v += self.nt
        self.vAr = v; v += 1
        self.vWr = v; v += self.nt
        self.vAd = v; v += 1
        self.vWd = v; v += 1
        self.vT = v; v += 4
        self.vend = v
    def split(self):
        return self.na if EXP.get('split') and not self.deep else 0
    def acc(self, i, j): return (i * self.nt + j) * 16

    def setup(self, a, vlane, swave, KB, Nbytes):
        mt, nt, RB = self.mt, self.nt, self.RB
        t0, t1, t2 = self.vT, self.vT + 1, self.vT + 2
        a(f's_lshr_b32 s{S_T0}, s{swave}, 1\ns_mul_i32 s{S_T0}, s{S_T0}, {mt*2048}')
        a(f'v_lshlrev_b32 v{self.vAr0}, 4, v{vlane}\nv_add_u32 v{self.vAr0}, s{S_T0}, v{self.vAr0}')
        a(f'v_lshrrev_b32 v{t0}, 2, v{vlane}\nv_and_b32 v{t0}, 3, v{t0}')
        a(f'v_lshrrev_b32 v{t1}, 5, v{vlane}\nv_lshlrev_b32 v{t1}, 2, v{t1}\nv_add_u32 v{t1}, v{t1}, v{t0}')
        a(f'v_mul_u32_u24 v{t1}, {RB}, v{t1}')
        a(f'v_and_b32 v{t2}, 3, v{vlane}\nv_lshlrev_b32 v{t2}, 3, v{t2}\nv_add_u32 v{t1}, v{t1}, v{t2}')
        a(f'v_and_b32 v{t2}, 16, v{vlane}\nv_lshlrev_b32 v{t2}, 1, v{t2}\nv_add_u32 v{t1}, v{t1}, v{t2}')
        a(f'v_add_u32 v{t1}, {self.abytes}, v{t1}')
        if RB == 128: a(f'v_lshrrev_b32 v{t0}, 1, v{t0}')
        a(f's_and_b32 s{S_T0}, s{swave}, 1\ns_mul_i32 s{S_T0}, s{S_T0}, {nt}')
        for j in range(nt):
            a(f's_add_u32 s{S_T1}, s{S_T0}, {j}\nv_xor_b32 v{t2}, s{S_T1}, v{t0}\nv_lshlrev_b32 v{t2}, 6, v{t2}')
            a(f'v_add_u32 v{self.vWr0+j}, v{t1}, v{t2}')
        na = self.na
        if na >= 2:
            a(f's_mul_i32 s{S_T0}, s{swave}, {(na//2)*KB*1024}')
        else:
            a(f's_lshr_b32 s{S_T0}, s{swave}, 1\ns_mul_i32 s{S_T0}, s{S_T0}, {KB*1024}')
            a(f's_and_b32 s{S_T1}, s{swave}, 1\ns_lshl_b32 s{S_T1}, s{S_T1}, 10\ns_add_u32 s{S_T0}, s{S_T0}, s{S_T1}')
        a(f'v_lshlrev_b32 v{self.vAd}, 4, v{vlane}\nv_add_u32 v{self.vAd}, s{S_T0}, v{self.vAd}')
        rpi = 1024 // RB; lpr = RB // 16
        sh = lpr.bit_length() - 1
        a(f'v_lshrrev_b32 v{t0}, {sh}, v{vlane}')
        a(f's_mul_i32 s{S_T0}, s{swave}, {rpi}\nv_add_u32 v{t0}, s{S_T0}, v{t0}')
        a(f'v_and_b32 v{t1}, 3, v{t0}')
        if RB == 128: a(f'v_lshrrev_b32 v{t1}, 1, v{t1}')
        a(f'v_and_b32 v{t2}, {lpr-1}, v{vlane}\nv_lshrrev_b32 v{t2}, 2, v{t2}\nv_xor_b32 v{t1}, v{t1}, v{t2}\nv_lshlrev_b32 v{t1}, 6, v{t1}')
        a(f'v_and_b32 v{t2}, 3, v{vlane}\nv_lshlrev_b32 v{t2}, 4, v{t2}\nv_add_u32 v{t1}, v{t1}, v{t2}')
        a(f's_mov_b32 s{S_T0}, {Nbytes}\nv_mul_lo_u32 v{t0}, v{t0}, s{S_T0}\nv_add_u32 v{self.vWd}, v{t0}, v{t1}')
        a(f's_mov_b32 s{S_WSTEP8}, {4*rpi*Nbytes}\ns_mov_b32 s{S_WSTEP}, {32*Nbytes}')
        a(f's_mul_i32 s{S_LDSW}, s{swave}, {1024*self.na}')
        self.KB = KB; self.swave = swave

    def dma_ops(self):
        ops = []
        KB = self.KB
        for q in range(self.na):
            if q % 2 == 0 or self.na < 2:
                g = f's_add_u32 m0, s{S_STG_WR}, s{S_LDSW}' if q == 0 else f's_add_u32 m0, m0, 2048'
                if q == 0: so = f's{S_AOFF}'; g += '\ns_nop 0'
                else:
                    g += f'\ns_add_u32 s{S_T1}, s{S_AOFF}, {(q//2)*KB*1024}'; so = f's{S_T1}'
                ops.append(g + f'\nbuffer_load_dwordx4 v{self.vAd}, s[{S_ASRD}:{S_ASRD+3}], {so} offen{self.asc} lds')
                last = so
            else:
                ops.append(f'buffer_load_dwordx4 v{self.vAd}, s[{S_ASRD}:{S_ASRD+3}], {last} offen offset:1024{self.asc} lds')
        for j in range(self.nw):
            if j == 0:
                g = f's_lshl_b32 s{S_T0}, s{self.swave}, 10\ns_add_u32 s{S_T0}, s{S_T0}, s{S_STG_WR}\ns_add_u32 m0, s{S_T0}, {self.abytes}\ns_mov_b32 s{S_T1}, s{S_WOFF}'
            else:
                g = f's_add_u32 m0, m0, 4096\ns_add_u32 s{S_T1}, s{S_T1}, s{S_WSTEP8}'
            ops.append(g + f'\nbuffer_load_dwordx4 v{self.vWd}, s[{S_WSRD}:{S_WSRD+3}], s{S_T1} offen lds')
        ops.append(f's_add_u32 s{S_AOFF}, s{S_AOFF}, 2048\ns_add_u32 s{S_WOFF}, s{S_WOFF}, s{S_WSTEP}\n'
                   f's_add_u32 s{S_STG_WR}, s{S_STG_WR}, {self.stage}\ns_cmp_eq_u32 s{S_STG_WR}, {self.lds}\n'
                   f's_cselect_b32 s{S_STG_WR}, 0, s{S_STG_WR}\n'
                   f's_sub_u32 s{S_NREM}, s{S_NREM}, 1\ns_cmp_gt_i32 s{S_NREM}, 0\n'
                   f's_cselect_b32 s{S_ASRD+2}, s{S_ASRD+2}, 0\ns_cselect_b32 s{S_WSRD+2}, s{S_WSRD+2}, 0')
        return ops

    def read_ops(self, fs, kb):
        ops = []
        aops = [f'ds_read_b128 {vr(self.vA[fs]+4*i,4)}, v{self.vAr} offset:{(i*2+kb)*1024}' for i in range(self.mt)]
        wops = []
        for j in range(self.nt):
            for h in range(2):
                wops.append(f'ds_read_b64_tr_b16 {vr(self.vW[fs]+4*j+2*h,2)}, v{self.vWr+j} offset:{(kb*16+h*8)*self.RB}')
        ops.append(aops[0]); ops += wops[:2]
        rest_a, rest_w = aops[1:], wops[2:]
        ops += rest_w + rest_a
        return ops

    def addr_ops(self):
        ops = [f's_add_u32 s{S_STG_RD}, s{S_STG_RD}, {self.stage}\ns_cmp_eq_u32 s{S_STG_RD}, {self.lds}\n'
               f's_cselect_b32 s{S_STG_RD}, 0, s{S_STG_RD}\nv_add_u32 v{self.vAr}, s{S_STG_RD}, v{self.vAr0}']
        for j in range(self.nt):
            ops.append(f'v_add_u32 v{self.vWr+j}, s{S_STG_RD}, v{self.vWr0+j}')
        return ops

    def mfma(self, fs, i, j, zero=False):
        A, W = vr(self.vA[fs] + 4*i, 4), vr(self.vW[fs] + 4*j, 4)
        c = ar(self.acc(i, j), 16)
        s0, s1 = (A, W) if self.vtype else (W, A)
        return f'v_mfma_f32_32x32x16_bf16 {c}, {s0}, {s1}, {"0" if zero else c}'

    def prologue(self, a):
        a(f's_mov_b32 s{S_STG_WR}, 0\ns_mov_b32 s{S_NREM}, s{S_CNT}')
        h = self.split()
        for c in range(self.S):
            ops = self.dma_ops()
            if h and c == self.S - 1: ops = ops[:h]
            for o in ops: a(o)

    def main_deep(self, a):
        nd, S = self.nd, self.S
        order = [(kb, i, j) for kb in range(2) for i in range(self.mt) for j in range(self.nt)]
        nm = len(order)
        a(f's_mov_b32 s{S_STG_RD}, 0\nv_mov_b32 v{self.vAr}, v{self.vAr0}')
        for j in range(self.nt): a(f'v_mov_b32 v{self.vWr+j}, v{self.vWr0+j}')
        for r in range(8 * nm): a(f'v_accvgpr_write_b32 a{r}, 0')
        a(f's_waitcnt vmcnt({(S-1)*nd})\ns_barrier')
        if EXP.get('ts'): a('s_memtime s[62:63]')
        reads = lambda p: self.read_ops(2*p, 0) + self.read_ops(2*p+1, 1)
        for o in reads(0) + self.addr_ops(): a(o)
        loop = a.label('gd')
        a(f'{loop}:')
        for p in range(2):
            rd = reads(p ^ 1); rest = self.dma_ops() + self.addr_ops()
            gaps = [[] for _ in range(nm)]
            nr = max(1, min(nm - 1, EXP.get('rgaps', 2)))
            for k, o in enumerate(rd): gaps[k * nr // len(rd)].append(o)
            g0 = min(nr, nm - 1)
            for k, o in enumerate(rest): gaps[g0 + k * (nm - g0) // len(rest)].append(o)
            a(f's_waitcnt lgkmcnt({len(rd)//2})')
            for n, (kb, i, j) in enumerate(order):
                a(self.mfma(2*p + kb, i, j))
                if n == 0: a(f's_waitcnt vmcnt({(S-2)*nd}) lgkmcnt(0)\ns_barrier')
                for o in gaps[n]: a(o)
        a(f's_sub_u32 s{S_CNT}, s{S_CNT}, 2\ns_cmp_lg_u32 s{S_CNT}, 0\ns_cbranch_scc1 {loop}')
        if EXP.get('ts'): a('s_memtime s[64:65]')
        a('s_waitcnt vmcnt(0) lgkmcnt(0)\ns_nop 15')

    def main(self, a):
        if self.deep: return self.main_deep(a)
        nd, S = self.nd, self.S
        order = [(i, j) for i in range(self.mt) for j in range(self.nt)]
        nm = len(order)
        a(f's_mov_b32 s{S_STG_RD}, 0\nv_mov_b32 v{self.vAr}, v{self.vAr0}')
        for j in range(self.nt): a(f'v_mov_b32 v{self.vWr+j}, v{self.vWr0+j}')
        for r in range(16 * nm): a(f'v_accvgpr_write_b32 a{r}, 0')
        h0 = self.split()
        a(f's_waitcnt vmcnt({(S-2)*nd + (h0 if h0 else nd)})\ns_barrier')
        if EXP.get('ts'): a('s_memtime s[62:63]')
        for o in self.read_ops(0, 0): a(o)
        loop = a.label('gl')
        a(f'{loop}:')
        def phase(fs, early, late, pre):
            early = list(early); late = list(late)
            gaps = [[] for _ in range(nm)]
            g = 0
            pe = max(2, -(-len(early) // max(nm - 1, 1)))
            while early:
                for _ in range(pe):
                    if early: gaps[min(g, nm-1)].append(early.pop(0))
                g += 1
            g0 = min(g, nm - 1) if EXP.get('late_after', True) else 0
            n = len(late)
            for k, o in enumerate(late):
                gaps[min(nm - 1, g0 + (k * (nm - g0)) // max(n, 1))].append(o)
            a('s_waitcnt lgkmcnt(0)')
            for n, (i, j) in enumerate(order):
                a(self.mfma(fs, i, j))
                if n == 0 and pre: a(pre)
                for o in gaps[n]: a(o)
        dm = self.dma_ops()
        if EXP.get('nodma'): dm = dm[-1:]
        h = self.split()
        bar = f's_waitcnt vmcnt({(S-2)*nd})\ns_barrier'
        if EXP.get('nobar'): bar = None
        phase(0, self.read_ops(1, 1), self.addr_ops() + (dm[h:] if h else []), None)
        phase(1, self.read_ops(0, 0), dm[:h] if h else dm, bar)
        a(f's_sub_u32 s{S_CNT}, s{S_CNT}, 1\ns_cmp_lg_u32 s{S_CNT}, 0\ns_cbranch_scc1 {loop}')
        if EXP.get('ts'): a('s_memtime s[64:65]')
        a('s_waitcnt vmcnt(0) lgkmcnt(0)\ns_nop 15')

    def epi_bf16(self, a, osrd, svoff, vaddr, tbstride, relu=False):
        t = self.vA[0]
        n = 0
        for i in range(self.mt):
            a(f's_add_u32 s{S_T1}, s{svoff}, {i*tbstride}')
            for j in range(self.nt):
                for h in range(2):
                    b = t + (n % 2) * 12; n += 1
                    for r in range(8): a(f'v_accvgpr_read_b32 v{b+r}, a{self.acc(i,j)+8*h+r}')
                    if relu:
                        for r in range(8): a(f'v_max_f32 v{b+r}, 0, v{b+r}')
                    for r in range(4): a(f'v_cvt_pk_bf16_f32 v{b+8+r}, v{b+2*r}, v{b+2*r+1}')
                    off = (j*2+h) * 1024
                    if off >= 4096:
                        if off % 4096 == 0: a(f's_add_u32 s{S_T1}, s{S_T1}, 4096')
                        off %= 4096
                    a(f'buffer_store_dwordx4 {vr(b+8,4)}, v{vaddr}, s[{osrd}:{osrd+3}], s{S_T1} offen offset:{off}{self.osc}')

    def epi_res(self, a, xsrd, msrd, osrd, svoff, vaddr, smod, vmod, R0, out_rowmajor=False, sout=None, vout=None, part='all'):
        nb = self.nt * 2
        G = R0; X = G + 8 * nb; T = X + 4 * nb * self.mt
        if part != 'math':
            for b in range(nb):
                for h in range(2):
                    a(f'buffer_load_dwordx4 {vr(G+8*b+4*h,4)}, v{vmod}, s[{msrd}:{msrd+3}], s{smod} offen offset:{64*b+16*h}')
            for i in range(self.mt):
                a(f's_add_u32 s{S_T1}, s{svoff}, {i*65536}')
                for b in range(nb):
                    if b == 4: a(f's_add_u32 s{S_T1}, s{S_T1}, 4096')
                    a(f'buffer_load_dwordx4 {vr(X+4*(i*nb+b),4)}, v{vaddr}, s[{xsrd}:{xsrd+3}], s{S_T1} offen offset:{(b%4)*1024}{self.osc}')
            if part == 'load': return T + 12
        n = 0; tot = self.mt * nb
        for i in range(self.mt):
            if out_rowmajor: a(f's_add_u32 s{S_T1}, s{sout}, {i*65536}')
            else: a(f's_add_u32 s{S_T1}, s{svoff}, {i*65536}')
            for b in range(nb):
                j, h = b // 2, b % 2
                x = X + 4 * (i*nb + b)
                for r in range(8): a(f'v_accvgpr_read_b32 v{T+r}, a{self.acc(i,j)+8*h+r}')
                for r in range(4): a(f'v_cvt_pk_bf16_f32 v{T+8+r}, v{T+2*r}, v{T+2*r+1}')
                for r in range(4): a(f'v_lshlrev_b32 v{T+2*r}, 16, v{T+8+r}\nv_and_b32 v{T+2*r+1}, 0xffff0000, v{T+8+r}')
                if n == 0 and part == 'all': a(f's_waitcnt vmcnt({tot})')
                for r in range(8): a(f'v_mul_f32 v{T+r}, v{T+r}, v{G+8*b+r}')
                for r in range(4): a(f'v_cvt_pk_bf16_f32 v{T+8+r}, v{T+2*r}, v{T+2*r+1}')
                if part == 'all': a(f's_waitcnt vmcnt({tot-1})')
                for r in range(4):
                    a(f'v_lshlrev_b32 v{T+2*r}, 16, v{T+8+r}\nv_and_b32 v{T+2*r+1}, 0xffff0000, v{T+8+r}')
                    a(f'v_lshlrev_b32 v{T+8+r}, 16, v{x+r}\nv_and_b32 v{x+r}, 0xffff0000, v{x+r}')
                for r in range(4): a(f'v_add_f32 v{T+2*r}, v{T+2*r}, v{T+8+r}\nv_add_f32 v{T+2*r+1}, v{T+2*r+1}, v{x+r}')
                for r in range(4): a(f'v_cvt_pk_bf16_f32 v{x+r}, v{T+2*r}, v{T+2*r+1}')
                if out_rowmajor:
                    a(f'v_permlane32_swap_b32 v{x}, v{x+2}\nv_permlane32_swap_b32 v{x+1}, v{x+3}')
                    a(f'buffer_store_dwordx4 {vr(x,4)}, v{vout}, s[{osrd}:{osrd+3}], s{S_T1} offen offset:{32*b}')
                else:
                    if b == 4: a(f's_add_u32 s{S_T1}, s{S_T1}, 4096')
                    a(f'buffer_store_dwordx4 {vr(x,4)}, v{vaddr}, s[{osrd}:{osrd+3}], s{S_T1} offen offset:{(b%4)*1024}{self.osc}')
                n += 1
        return T + 12


class GemmD(Gemm):
    U = 8
    def __init__(self, TM, TN, vtype=False, vbase=0, asc='', osc='', WN=1, lds0=0, U=8):
        self.U = U
        self.TM, self.TN, self.vtype, self.asc, self.osc, self.WN, self.WM = TM, TN, vtype, asc, osc, WN, 4 // WN
        self.mt, self.nt = TM // 32 // self.WM, TN // 32 // WN
        self.RB = TN * 2; self.abytes = lds0; self.wbytes = 32 * self.RB
        self.lds = lds0 + self.wbytes * self.U
        assert self.lds <= 65536 + lds0
        self.nw = self.wbytes // 4096; self.nd = self.nw + 2 * self.mt
        v = vbase
        self.vA = [v + 4 * self.mt * k for k in range(2 * self.U)]; v += 8 * self.mt * self.U
        self.vW = [v + 4 * self.nt * k for k in range(4)]; v += 16 * self.nt
        self.vWr0 = v; v += self.nt
        self.vAd = v; v += self.mt
        self.vWd = v; v += 1
        self.vT = v; v += 4
        self.vend = v
    def setup(self, a, vlane, swave, KB, Nbytes):
        mt, nt, RB = self.mt, self.nt, self.RB
        t0, t1, t2 = self.vT, self.vT + 1, self.vT + 2
        a(f'v_lshrrev_b32 v{t0}, 2, v{vlane}\nv_and_b32 v{t0}, 3, v{t0}')
        a(f'v_lshrrev_b32 v{t1}, 5, v{vlane}\nv_lshlrev_b32 v{t1}, 2, v{t1}\nv_add_u32 v{t1}, v{t1}, v{t0}')
        a(f'v_mul_u32_u24 v{t1}, {RB}, v{t1}')
        a(f'v_and_b32 v{t2}, 3, v{vlane}\nv_lshlrev_b32 v{t2}, 3, v{t2}\nv_add_u32 v{t1}, v{t1}, v{t2}')
        a(f'v_and_b32 v{t2}, 16, v{vlane}\nv_lshlrev_b32 v{t2}, 1, v{t2}\nv_add_u32 v{t1}, v{t1}, v{t2}')
        if self.abytes: a(f'v_add_u32 v{t1}, {self.abytes}, v{t1}')
        if RB == 128: a(f'v_lshrrev_b32 v{t0}, 1, v{t0}')
        a(f's_and_b32 s{S_T0}, s{swave}, {self.WN-1}\ns_mul_i32 s{S_T0}, s{S_T0}, {nt}')
        for j in range(nt):
            a(f's_add_u32 s{S_T1}, s{S_T0}, {j}\nv_xor_b32 v{t2}, s{S_T1}, v{t0}\nv_lshlrev_b32 v{t2}, 6, v{t2}')
            a(f'v_add_u32 v{self.vWr0+j}, v{t1}, v{t2}')
        a(f's_lshr_b32 s{S_T0}, s{swave}, {self.WN-1}\ns_mul_i32 s{S_T0}, s{S_T0}, {mt*KB*1024}')
        a(f'v_lshlrev_b32 v{self.vAd}, 4, v{vlane}\nv_add_u32 v{self.vAd}, s{S_T0}, v{self.vAd}')
        for i in range(1, mt): a(f'v_add_u32 v{self.vAd+i}, {i*KB*1024}, v{self.vAd}')
        rpi = 1024 // RB; lpr = RB // 16
        sh = lpr.bit_length() - 1
        a(f'v_lshrrev_b32 v{t0}, {sh}, v{vlane}')
        a(f's_mul_i32 s{S_T0}, s{swave}, {rpi}\nv_add_u32 v{t0}, s{S_T0}, v{t0}')
        a(f'v_and_b32 v{t1}, 3, v{t0}')
        if RB == 128: a(f'v_lshrrev_b32 v{t1}, 1, v{t1}')
        a(f'v_and_b32 v{t2}, {lpr-1}, v{vlane}\nv_lshrrev_b32 v{t2}, 2, v{t2}\nv_xor_b32 v{t1}, v{t1}, v{t2}\nv_lshlrev_b32 v{t1}, 6, v{t1}')
        a(f'v_and_b32 v{t2}, 3, v{vlane}\nv_lshlrev_b32 v{t2}, 4, v{t2}\nv_add_u32 v{t1}, v{t1}, v{t2}')
        a(f's_mov_b32 s{S_T0}, {Nbytes}\nv_mul_lo_u32 v{t0}, v{t0}, s{S_T0}\nv_add_u32 v{self.vWd}, v{t0}, v{t1}')
        a(f's_mov_b32 s{S_WSTEP8}, {4*rpi*Nbytes}\ns_lshl_b32 s{S_LDSW}, s{swave}, 10')
        self.KB = KB; self.swave = swave
    def w_ops(self, slot):
        return [f's_add_u32 m0, s{S_LDSW}, {self.abytes + slot*self.wbytes + 4096*j}\n'
                f'buffer_load_dwordx4 v{self.vWd}, s[{S_WSRD}:{S_WSRD+3}], s{S_WOFF} offen lds\n'
                f's_add_u32 s{S_WOFF}, s{S_WOFF}, s{S_WSTEP8}' for j in range(self.nw)]
    def a_ops(self, slot):
        ops = [f'buffer_load_dwordx4 {vr(self.vA[2*slot+kb]+4*i,4)}, v{self.vAd+i}, s[{S_ASRD}:{S_ASRD+3}], s{S_AOFF} offen offset:{(slot%2)*2048+kb*1024}{self.asc}'
               for kb in range(2) for i in range(self.mt)]
        if slot % 2: ops[-1] += f'\ns_add_u32 s{S_AOFF}, s{S_AOFF}, 4096'
        return ops
    def prologue_w(self, a):
        for c in range(self.U - 1):
            for o in self.w_ops(c): a(o)
        self.early = True
    def prologue(self, a):
        early = getattr(self, 'early', False)
        for c in range(self.U - 1):
            for o in ([] if early else self.w_ops(c)) + self.a_ops(c): a(o)
    def reads(self, p, slot):
        return [f'ds_read_b64_tr_b16 {vr(self.vW[2*p+kb]+4*j+2*h,2)}, v{self.vWr0+j} offset:{slot*self.wbytes + (kb*16+h*8)*self.RB}'
                for kb in range(2) for j in range(self.nt) for h in range(2)]
    def main(self, a):
        U, nd, mt, nt = self.U, self.nd, self.mt, self.nt
        early = getattr(self, 'early', False)
        order = [(kb, i, j) for kb in range(2) for j in range(nt) for i in range(mt)]
        nm = len(order)
        for r in range(8 * nm): a(f'v_accvgpr_write_b32 a{r}, 0')
        a(f's_waitcnt vmcnt({0 if early else (U-2)*nd})\ns_barrier')
        if EXP.get('ts'): a('s_memtime s[62:63]')
        for o in self.reads(0, 0): a(o)
        loop = a.label('gD')
        a(f'{loop}:')
        for c in range(U):
            p = c % 2
            rd = self.reads(p ^ 1, (c + 1) % U)
            rest = self.w_ops((c + U - 1) % U) + self.a_ops((c + U - 1) % U)
            if c == 0: rest.append(f's_cmp_eq_u32 s{S_CNT}, {U}\ns_cselect_b32 s{S_ASRD+2}, 0, s{S_ASRD+2}\ns_cselect_b32 s{S_WSRD+2}, 0, s{S_WSRD+2}')
            gaps = [[] for _ in range(nm)]
            nr = max(1, min(nm - 1, (nm + 1) // 2))
            for k, o in enumerate(rd): gaps[k * nr // len(rd)].append(o)
            for k, o in enumerate(rest): gaps[min(nm - 1, 1 + k * (nm - 1) // len(rest))].append(o)
            a(f's_waitcnt lgkmcnt({len(rd)//2})')
            for n, (kb, i, j) in enumerate(order):
                A, W = vr(self.vA[2*c+kb] + 4*i, 4), vr(self.vW[2*p+kb] + 4*j, 4)
                cc = ar(self.acc(i, j), 16)
                s0, s1 = (A, W) if self.vtype else (W, A)
                a(f'v_mfma_f32_32x32x16_bf16 {cc}, {s0}, {s1}, {cc}')
                if n == 0: a(f's_waitcnt vmcnt({(U-3)*nd}) lgkmcnt(0)\ns_barrier')
                for o in gaps[n]: a(o)
        a(f's_sub_u32 s{S_CNT}, s{S_CNT}, {U}\ns_cmp_lg_u32 s{S_CNT}, 0\ns_cbranch_scc1 {loop}')
        if EXP.get('ts'): a('s_memtime s[64:65]')
        a('s_waitcnt vmcnt(0) lgkmcnt(0)\ns_nop 15')
```

```python
from asmlib import *
from layout import *
from k_small import SCALE, LOG2E, unpack

C_XCD, C_FULL, C_MODE, C_T2 = 0, 1024, 1152, 1280
C_KV, C_MEM, C_Q, C_ST = 2048, 6144, 10240, 12288
FUSED = False
KV0_TARGET = 32
SLOT = 512 * 1024
R_X, R_O, R_S, R_P = 0, 65536, 131072, 393216
S_STRIDE = 1280
L_ACC, L_M, L_ROLE, L_KX, L_VX, L_STG = 0, 13824, 18432, 20480, 22528, 28672
MS = 4608
CHAIN_LDS = L_STG + 4 * 32768
OOB = 0x40000000
sRING, sWS, sW = 8, 12, 16
sX, sC, sCU, sSTEP, sSLOT, sNEXT, sRST, sBUD, sSEG, sKM, sT, sT2, sMODE = range(20, 33)
sTS = 36
TIMING = False
ACK = True
PROF = False
EXPF = ''
PACK = True
OACK = True
XACK = True
NSTEP = 64
POLL_BUDGET = 400000

def stamp(a, i):
    if TIMING: a(f's_memtime s[{sTS+2*i}:{sTS+2*i+1}]')

def roles(a, end, ngrid):
    srd_off(a, sW, 4, CTL, 65536)
    a(f's_getreg_b32 s{sX}, hwreg(HW_REG_XCC_ID, 0, 4)\ns_and_b32 s{sX}, s{sX}, 7')
    skip = a.label('rs'); nf = a.label('nf')
    a(f's_cmp_lg_u32 s3, 0\ns_cbranch_scc1 {skip}')
    a(f's_lshl_b32 s{sT}, s{sX}, 7\nv_mov_b32 v2, 0\nv_mov_b32 v4, 1\ns_mov_b64 exec, 1')
    a(f'buffer_atomic_add v4, v2, s[{sW}:{sW+3}], s{sT} offen sc0\ns_waitcnt vmcnt(0)')
    a(f'v_readfirstlane_b32 s{sC}, v4\nds_write_b32 v2, v4 offset:{L_ROLE}')
    a(f's_cmp_lg_u32 s{sC}, 31\ns_cbranch_scc1 {nf}\ns_cmp_ge_u32 s{sX}, {8 if FUSED else 4}\ns_cbranch_scc1 {nf}')
    a(f'v_mov_b32 v4, 1\nbuffer_atomic_add v4, v2, s[{sW}:{sW+3}], 0 offen offset:{C_FULL} sc0 sc1\ns_waitcnt vmcnt(0)')
    a(f'v_readfirstlane_b32 s{sT}, v4\ns_cmp_lg_u32 s{sT}, {7 if FUSED else 3}\ns_cbranch_scc1 {nf}')
    a(f'v_mov_b32 v4, 1\nv_mov_b32 v5, 0\nbuffer_atomic_cmpswap v[4:5], v2, s[{sW}:{sW+3}], 0 offen offset:{C_MODE} sc1')
    a(f'{nf}:\ns_mov_b64 exec, -1\n{skip}:')
    a(f's_waitcnt lgkmcnt(0)\ns_barrier\nv_mov_b32 v2, 0\nds_read_b32 v4, v2 offset:{L_ROLE}\ns_waitcnt lgkmcnt(0)\nv_readfirstlane_b32 s{sC}, v4')
    a(f's_mov_b32 s{sMODE}, 0')

def wait_mode(a, load, end, worker=None):
    go = a.label('go'); skip = a.label('ms'); lp = a.label('mp'); got = a.label('mg'); fast = a.label('mf')
    a(f's_cmp_lg_u32 s{sMODE}, 0\ns_cbranch_scc1 {go}')
    srd_off(a, sW, 4, CTL, 65536)
    a(f's_barrier\ns_cmp_lg_u32 s3, 0\ns_cbranch_scc1 {skip}')
    a(f's_mov_b32 s{sT}, 4000\nv_mov_b32 v2, 0\ns_mov_b64 exec, 1\n{lp}:')
    a(f'buffer_load_dword v4, v2, s[{sW}:{sW+3}], 0 offen offset:{C_MODE} sc1\ns_waitcnt vmcnt(0)')
    a(f'v_readfirstlane_b32 s{sT2}, v4\ns_cmp_lg_u32 s{sT2}, 0\ns_cbranch_scc1 {got}')
    a(f's_sub_u32 s{sT}, s{sT}, 1\ns_cmp_lg_u32 s{sT}, 0\ns_cbranch_scc1 {lp}')
    a(f'v_mov_b32 v4, 2\nv_mov_b32 v5, 0\nbuffer_atomic_cmpswap v[4:5], v2, s[{sW}:{sW+3}], 0 offen offset:{C_MODE} sc0 sc1\ns_waitcnt vmcnt(0)')
    a(f'v_readfirstlane_b32 s{sT2}, v4\ns_cmp_eq_u32 s{sT2}, 0\ns_cselect_b32 s{sT2}, 2, s{sT2}')
    a(f'{got}:\nv_mov_b32 v4, s{sT2}\nv_mov_b32 v5, 1\ns_cmp_eq_u32 s{sT2}, 1\ns_cbranch_scc1 {fast}')
    a(f'buffer_atomic_add v5, v2, s[{sW}:{sW+3}], 0 offen offset:{C_T2} sc0 sc1\ns_waitcnt vmcnt(0)')
    a(f'{fast}:\nds_write_b64 v2, v[4:5] offset:{L_ROLE+8}\ns_mov_b64 exec, -1\n{skip}:')
    a(f's_waitcnt lgkmcnt(0)\ns_barrier\nv_mov_b32 v2, 0\nds_read_b64 v[4:5], v2 offset:{L_ROLE+8}\ns_waitcnt lgkmcnt(0)')
    a(f'v_readfirstlane_b32 s{sMODE}, v4\nv_readfirstlane_b32 s{sT}, v5\ns_cmp_eq_u32 s{sMODE}, 2')
    nat = a.label('nat')
    a(f's_cbranch_scc0 {nat}')
    worker = worker or end
    a(f's_cmp_ge_u32 s{sT}, 256\ns_cbranch_scc1 {end}\ns_lshr_b32 s{sX}, s{sT}, 5\ns_and_b32 s{sC}, s{sT}, 31')
    a(f's_cmp_ge_u32 s{sT}, 128\ns_cbranch_scc1 {worker}\ns_branch {load}')
    a(f'{nat}:\ns_cmp_ge_u32 s{sC}, 32\ns_cbranch_scc1 {end}\ns_cmp_ge_u32 s{sX}, 4\ns_cbranch_scc1 {worker}\n{go}:')

def blockid(a, d, p):
    a(f's_lshl_b32 s{d}, s3, 2\ns_add_u32 s{d}, s{d}, {p}')
    if ROT: a(f's_add_u32 s{d}, s{d}, s{sC}\ns_and_b32 s{d}, s{d}, 15')

def load_weights(a):
    a(f's_lshl_b32 s{sCU}, s{sX}, 5\ns_add_u32 s{sCU}, s{sCU}, s{sC}')
    a('s_load_dwordx4 s[60:63], s[0:1], 16\ns_load_dwordx4 s[64:67], s[0:1], 32')
    a('v_lshrrev_b32 v4, 2, v0\nv_and_b32 v5, 3, v0\nv_lshlrev_b32 v5, 4, v5\nv_lshl_add_u32 v6, v4, 13, v5\nv_lshl_add_u32 v7, v4, 11, v5')
    a('v_bfe_u32 v8, v0, 3, 1\nv_lshlrev_b32 v8, 5, v8\nv_bfe_u32 v9, v0, 2, 1\nv_add_u32 v8, v8, v9')
    a('v_bfe_u32 v9, v0, 5, 1\nv_bfe_u32 v10, v0, 4, 1')
    a('v_lshl_add_u32 v11, v9, 3, v8\nv_lshl_add_u32 v11, v10, 2, v11\nv_lshl_add_u32 v12, v10, 4, v8\nv_lshl_add_u32 v12, v9, 2, v12')
    a(f's_lshl_b32 s{sT2}, s3, 15\ns_add_u32 s{sT2}, s{sT2}, {L_STG}')
    a(f'v_and_b32 v9, 3, v0\nv_lshlrev_b32 v9, 3, v9\nv_add_u32 v9, s{sT2}, v9\nv_lshl_add_u32 v11, v11, 6, v9\nv_lshl_add_u32 v12, v12, 6, v9')
    a('s_waitcnt lgkmcnt(0)')
    def issue(m):
        srd(a, sW, 60 + 2*m, 8*MB)
        if m < 3: a(f's_lshl_b32 s34, s{sCU}, 6'); step, v, sh = 16*8192, 6, 19
        else: a(f's_lshl_b32 s34, s{sX}, 21\ns_lshl_b32 s33, s{sC}, 6\ns_add_u32 s34, s34, s33'); step, v, sh = 16*2048, 7, 17
        a(f's_add_u32 m0, s{sT2}, {(m%2)*16384}')
        for i in range(16):
            if i % 4 == 0:
                blockid(a, sT, i // 4); a(f's_lshl_b32 s{sT}, s{sT}, {sh}\ns_add_u32 s{sT}, s{sT}, s34')
            a(f'buffer_load_dwordx4 v{v}, s[{sW}:{sW+3}], s{sT} offen lds')
            if i < 15: a(f's_add_u32 m0, m0, 1024\ns_add_u32 s{sT}, s{sT}, {step}')
    def read(m):
        for t in range(2):
            for p in range(4):
                for u in range(4):
                    row = 64*p + (16 if m < 3 else 8)*(u//2) + 2*(u % 2)
                    a(f'ds_read_b64_tr_b16 {ar(m*64+(t*4+p)*8+2*u,2)}, v{11 if m < 3 else 12} offset:{(m%2)*16384 + row*64 + 32*t}')
        a('s_waitcnt lgkmcnt(0)')
    issue(0); issue(1)
    a('s_waitcnt vmcnt(16)'); read(0); issue(2)
    a('s_waitcnt vmcnt(16)'); read(1); issue(3)
    a('s_waitcnt vmcnt(16)'); read(2)
    a('s_waitcnt vmcnt(0)'); read(3)

vIDX, vACC, vTT, vGX, vGO = 2, 5, 6, 240, 244
ROT = True
XA, D, F = 8, 24, 48
def common_setup(a):
    srd_off(a, sRING, 4, RING, 4*SLOT + 65536)
    srd_off(a, sWS, 4, KF, TS + MB - KF)
    a(f'v_and_b32 v6, 8, v0\nv_mov_b32 v{vIDX}, 0x4444\nv_mov_b32 v7, 0xeeee\nv_cmp_ne_u32 vcc, 0, v6\nv_cndmask_b32 v{vIDX}, v{vIDX}, v7, vcc')
    a('v_lshlrev_b32 v6, 4, v0')
    for p in range(4):
        blockid(a, sT2, p)
        a(f's_lshl_b32 s{sT}, s{sX}, 14\ns_lshl_b32 s{sT2}, s{sT2}, 10\ns_add_u32 s{sT}, s{sT}, s{sT2}')
        a(f'v_add_u32 v{vGX+p}, s{sT}, v6\nv_add_u32 v{vGO+p}, {R_O}, v{vGX+p}')
    a(f'v_bfe_u32 v6, v0, 4, 1\nv_mul_u32_u24 v6, 576, v6\nv_bfe_u32 v7, v0, 5, 1\nv_lshl_add_u32 v6, v7, 6, v6\nv_and_b32 v7, 15, v0\nv_lshl_add_u32 v{vACC}, v7, 2, v6\ns_mul_i32 s{sT}, s3, 1152\nv_add_u32 v{vACC}, s{sT}, v{vACC}')
    a(f's_mov_b32 s{sSTEP}, 0\ns_mov_b32 s{sSLOT}, 0\ns_mov_b32 s{sNEXT}, {SLOT}\ns_mov_b32 s{sRST}, {2*SLOT}\ns_mov_b32 s{sBUD}, {POLL_BUDGET}')
    a(f's_lshl_b32 s{sSEG}, s{sCU}, 11\ns_lshl_b32 s{sKM}, s{sCU}, 9\ns_add_u32 s{sKM}, s{sKM}, {KM-KF}')

def retry_tail(a, again, ok):
    a(f's_cbranch_vccz {ok}\ns_cmp_eq_u32 s{sBUD}, 0\ns_cbranch_scc1 {ok}\ns_sub_u32 s{sBUD}, s{sBUD}, 1\ns_branch {again}\n{ok}:')

COLD = []
def gather_mm(a, vaddr, mats, lds_off, shadow=None, mid=None, st=None, defer_last=False):
    nt = 2 * len(mats)
    def ld(p): return f'buffer_load_dwordx4 {vr(XA+4*p,4)}, v{vaddr+p}, s[{sRING}:{sRING+3}], s{sSLOT} offen sc1'
    def mm(mi, t, p): return f'v_smfmac_f32_16x16x64_bf16 {vr(D+8*mi+4*t,4)}, {vr(XA+4*p,4)}, {ar(mats[mi]*64+(t*4+p)*8,8)}, v{vIDX}'
    for p in range(4): a(ld(p))
    for r in range(4*nt): a(f'v_mov_b32 v{D+r}, 0')
    if shadow: shadow()
    nu = min(len(mats), 2)
    for p in range(4):
        again = a.label('ga'); ok = a.label('go'); rt = a.label('gr')
        x = XA + 4*p
        a(f'{again}:\ns_waitcnt vmcnt({3-p})')
        a(f'v_max3_u32 v{vTT}, v{x}, v{x+1}, v{x+2}\nv_max_u32 v{vTT}, v{vTT}, v{x+3}\nv_cmp_eq_u32 vcc, -1, v{vTT}')
        a(f's_cbranch_vccnz {rt}\n{ok}:')
        COLD.append(f'{rt}:\ns_cmp_eq_u32 s{sBUD}, 0\ns_cbranch_scc1 {ok}\ns_sub_u32 s{sBUD}, s{sBUD}, 1\n' +
                    '\n'.join(ld(q) for q in range(p, 4)) + f'\ns_branch {again}')
        if p == 3 and st is not None: stamp(a, st)
        for mi in range(nu):
            for t in range(2): a(mm(mi, t, p))
    def fold(mi):
        d = D + 8*mi
        ops = [f'v_permlane32_swap_b32 v{d+r}, v{d+4+r}' for r in range(4)]
        ops += [f'v_add_f32 v{d+r}, v{d+r}, v{d+4+r}' for r in range(4)]
        ops += [f'ds_write_b32 v{vACC}, v{d+r} offset:{lds_off + mi*MS + r*144}' for r in range(4)]
        return ops
    pend = sum((fold(mi) for mi in range(nu)), [])
    for o in pend: a(o)
    if len(mats) == 3:
        mid()
        pend = [mm(2, t, p) for p in range(4) for t in range(2)] + fold(2)
        if defer_last: return pend
        for o in pend: a(o)

def cold(a):
    for c in COLD: a(c)
    COLD.clear()

def pkadd(a, d, s, n):
    for r in range(0, n, 2): a(f'v_pk_add_f32 {vr(d+r,2)}, {vr(d+r,2)}, {vr(s+r,2)}')

def step_end(a, loop):
    a(f's_add_u32 s{sSTEP}, s{sSTEP}, 1\ns_mov_b32 s{sSLOT}, s{sNEXT}\ns_mov_b32 s{sNEXT}, s{sRST}')
    a(f's_add_u32 s{sRST}, s{sRST}, {SLOT}\ns_and_b32 s{sRST}, s{sRST}, {4*SLOT-1}\ns_branch {loop}')
    cold(a)

def ts_flush(a, n, w, i0=0):
    if not TIMING: return
    a('s_waitcnt lgkmcnt(0)')
    for i in range(n): a(f'v_writelane_b32 v250, s{sTS+2*(i+i0)}, {i}')
    a(f's_lshl_b32 s{sT}, s{sCU}, 8\ns_add_u32 s{sT}, s{sT}, s{sSTEP}\ns_lshl_b32 s{sT}, s{sT}, 2\ns_add_u32 s{sT}, s{sT}, {w*64*4}\ns_lshl_b32 s{sT}, s{sT}, 3\ns_add_u32 s{sT}, s{sT}, {TS-KF}')
    a(f'v_lshlrev_b32 v251, 2, v0\ns_mov_b64 exec, 0xff\nbuffer_store_dword v250, v251, s[{sWS}:{sWS+3}], s{sT} offen\ns_mov_b64 exec, -1')

def wave0(a, sc, done):
    KX, VX, QK, QB, S, G, GM, VF, VM0, VM1, PB, PM, O = 64, 72, 176, 88, 92, 104, 120, 208, 128, 132, 136, 140, 144
    vQK, vKX, vVX, vSst, vSm, vSld, vSml, vOst, T = range(152, 161)
    vVr = 224
    R = f's[{sRING}:{sRING+3}]'
    a(f'v_and_b32 v{T}, 15, v0\nv_lshrrev_b32 v{T+1}, 4, v0\nv_bfe_u32 v{T+2}, v0, 5, 1\nv_bfe_u32 v{T+3}, v0, 4, 1')
    a(f'v_and_b32 v{T+4}, 7, v0\nv_mul_u32_u24 v{vQK}, 144, v{T+4}\nv_bfe_u32 v{T+4}, v0, 3, 1\nv_mul_u32_u24 v{T+4}, {MS}, v{T+4}\nv_add_u32 v{vQK}, v{vQK}, v{T+4}\nv_lshl_add_u32 v{vQK}, v{T+2}, 6, v{vQK}\nv_lshl_add_u32 v{vQK}, v{T+3}, 4, v{vQK}')
    a(f'v_and_b32 v{T+4}, 7, v0\nv_and_b32 v{T+5}, 8, v0\nv_lshl_add_u32 v{vKX}, v{T+5}, 1, v{T+4}')
    a(f'v_lshl_add_u32 v{vKX}, v{T+3}, 5, v{vKX}\nv_lshlrev_b32 v{vKX}, 4, v{vKX}\nv_lshl_add_u32 v{vKX}, v{T+2}, 10, v{vKX}')
    a(f'v_lshl_add_u32 v{vVX}, v{T+3}, 5, v{T}\nv_lshlrev_b32 v{vVX}, 4, v{vVX}\nv_lshl_add_u32 v{vVX}, v{T+2}, 10, v{vVX}')
    a(f's_mul_i32 s{sT}, s{sCU}, {S_STRIDE}\ns_add_u32 s{sT}, s{sT}, {R_S}\ns_and_b32 s{sT2}, s{sCU}, 0x7c\ns_mul_i32 s{sT2}, s{sT2}, {S_STRIDE}\ns_add_u32 s{sT2}, s{sT2}, {R_S}')
    a(f'v_lshlrev_b32 v{T+6}, 4, v{T+4}\nv_lshl_add_u32 v{T+7}, v{T+1}, 7, v{T+6}')
    a(f'v_add_u32 v{vSst}, s{sT}, v{T+7}\nv_add_u32 v{vSm}, 768, v{vSst}\nv_mov_b32 v{T+8}, {OOB}')
    a(f'v_cmp_ne_u32 vcc, 0, v{T+5}\nv_cndmask_b32 v{vSst}, v{vSst}, v{T+8}, vcc\nv_cndmask_b32 v{vSm}, v{vSm}, v{T+8}, vcc')
    a(f'v_cmp_eq_u32 vcc, 0, v{T+2}\nv_cndmask_b32 v{vSm}, v{vSm}, v{T+8}, vcc')
    a(f'v_lshl_add_u32 v{vSld}, v{T+5}, 6, v{T+7}\nv_add_u32 v{vSld}, s{sT2}, v{vSld}')
    a(f'v_lshl_add_u32 v{vSml}, v{T+2}, 7, v{T+6}\nv_lshl_add_u32 v{vSml}, v{T+3}, 3, v{vSml}\nv_lshrrev_b32 v{T+9}, 1, v{T+5}')
    a(f'v_add_u32 v{vSml}, v{vSml}, v{T+9}\nv_add_u32 v{vSml}, s{sT2}, v{vSml}\nv_add_u32 v{vSml}, 1024, v{vSml}')
    a(f'v_mul_u32_u24 v{vVr}, 288, v{T+1}\nv_lshl_add_u32 v{vVr}, v{T}, 2, v{vVr}\nv_add_u32 v{vVr}, {L_ACC+2*MS}, v{vVr}')
    for w in range(1, 4): a(f'v_add_u32 v{vVr+w}, {1152*w}, v{vVr}')
    a(f's_lshr_b32 s{sT}, s{sC}, 1\ns_lshl_b32 s{sT}, s{sT}, 10\ns_and_b32 s{sT2}, s{sC}, 1\ns_lshl_b32 s{sT2}, s{sT2}, 7\ns_add_u32 s{sT}, s{sT}, s{sT2}')
    a(f's_lshl_b32 s{sT2}, s{sX}, 14\ns_add_u32 s{sT}, s{sT}, s{sT2}\ns_add_u32 s{sT}, s{sT}, {R_O}')
    a(f'v_lshl_add_u32 v{vOst}, v{T+1}, 8, v{T+6}\nv_add_u32 v{vOst}, s{sT}, v{vOst}\nv_cmp_ne_u32 vcc, 0, v{T+5}\nv_cndmask_b32 v{vOst}, v{vOst}, v{T+8}, vcc')
    for r in (VM0+1, VM0+2, VM0+3, VM1+1, VM1+2, VM1+3, PM+1, PM+2, PM+3): a(f'v_mov_b32 v{r}, 0')
    a(f's_mov_b32 s34, {LOG2E}\ns_mov_b32 s35, {SCALE}\ns_barrier')
    loop = a.label('w0')
    a(f'{loop}:')
    stamp(a, 0)
    def frags():
        for t in range(2):
            a(f'ds_read_b128 {vr(KX+4*t,4)}, v{vKX} offset:{L_KX+128*t}\nds_read_b128 {vr(VX+4*t,4)}, v{vVX} offset:{L_VX+256*t}')
    def b1():
        a('s_waitcnt lgkmcnt(0)\ns_barrier')
        stamp(a, 2)
        if TIMING: a(f's_mov_b32 s33, s{sBUD}')
        for w in range(4):
            a(f'ds_read_b128 {vr(QK+8*w,4)}, v{vQK} offset:{L_ACC+1152*w}\nds_read_b128 {vr(QK+8*w+4,4)}, v{vQK} offset:{L_ACC+1152*w+32}')
    vfold = gather_mm(a, vGX, [0, 1, 2], L_ACC, frags, b1, 1, True)
    a('s_waitcnt lgkmcnt(4)' if not TIMING else 's_waitcnt lgkmcnt(0)')
    pkadd(a, QK, QK+8, 8)
    a('s_waitcnt lgkmcnt(0)')
    pkadd(a, QK+16, QK+24, 8); pkadd(a, QK, QK+16, 8)
    for r in range(4): a(f'v_cvt_pk_bf16_f32 v{QB+r}, v{QK+2*r}, v{QK+2*r+1}')
    a(f'v_mfma_f32_16x16x32_bf16 {vr(S,4)}, {vr(KX,4)}, {vr(QB,4)}, 0')
    a(f'v_mfma_f32_16x16x32_bf16 {vr(S+4,4)}, {vr(KX+4,4)}, {vr(QB,4)}, 0')
    a(f'v_mfma_f32_16x16x32_bf16 {vr(S+8,4)}, {vr(QB,4)}, {vr(QB,4)}, 0')
    last = a.label('last')
    COLD.append(f'{last}:\n' + '\n'.join(vfold) + f'\ns_branch {done}')
    a(f's_cmp_eq_u32 s{sSTEP}, {NSTEP-1}\ns_cbranch_scc1 {last}')
    a(f'buffer_store_dwordx4 {vr(S,4)}, v{vSst}, {R}, s{sSLOT} offen{sc}')
    a(f'buffer_store_dwordx4 {vr(S+4,4)}, v{vSst}, {R}, s{sSLOT} offen offset:512{sc}')
    a(f'buffer_store_dwordx4 {vr(S+8,4)}, v{vSm}, {R}, s{sSLOT} offen{sc}')
    stamp(a, 3)
    for o in vfold: a(o)
    def sloads():
        for i in range(4):
            a(f'buffer_load_dwordx4 {vr(G+4*i,4)}, v{vSld}, {R}, s{sSLOT} offen offset:{S_STRIDE*i} sc1')
            a(f'buffer_load_dword v{GM+i}, v{vSml}, {R}, s{sSLOT} offen offset:{S_STRIDE*i} sc1')
    stamp(a, 8)
    if ACK: a('s_waitcnt vmcnt(0)')
    stamp(a, 9)
    if TIMING: a(f's_mov_b32 s33, s{sBUD}')
    sloads()
    a('s_waitcnt lgkmcnt(0)\ns_barrier')
    stamp(a, 10)
    for w in range(4):
        a(f'ds_read2_b32 {vr(VF+4*w,2)}, v{vVr+w} offset1:36\nds_read2_b32 {vr(VF+4*w+2,2)}, v{vVr+w} offset0:16 offset1:52')
    a(f'v_xor_b32 v{vKX}, 4096, v{vKX}\nv_xor_b32 v{vVX}, 4096, v{vVX}')
    a('s_waitcnt lgkmcnt(0)')
    pkadd(a, VF, VF+4, 4); pkadd(a, VF+8, VF+12, 4); pkadd(a, VF, VF+8, 4)
    a(f'v_cvt_pk_bf16_f32 v{VM0}, v{VF}, v{VF+1}\nv_cvt_pk_bf16_f32 v{VM1}, v{VF+2}, v{VF+3}')
    again = a.label('s'); ok = a.label('so'); chk = a.label('sc')
    a(f's_branch {chk}\n{again}:')
    sloads()
    a(f'{chk}:')
    a('s_waitcnt vmcnt(4)')
    a(f'v_pk_add_f32 {vr(G,2)}, {vr(G,2)}, {vr(G+4,2)}\nv_pk_add_f32 {vr(G+2,2)}, {vr(G+2,2)}, {vr(G+6,2)}\nv_add_f32 v{GM}, v{GM}, v{GM+1}')
    a('s_waitcnt vmcnt(0)')
    a(f'v_pk_add_f32 {vr(G+8,2)}, {vr(G+8,2)}, {vr(G+12,2)}\nv_pk_add_f32 {vr(G+10,2)}, {vr(G+10,2)}, {vr(G+14,2)}\nv_add_f32 v{GM+2}, v{GM+2}, v{GM+3}')
    a(f'v_pk_add_f32 {vr(G,2)}, {vr(G,2)}, {vr(G+8,2)}\nv_pk_add_f32 {vr(G+2,2)}, {vr(G+2,2)}, {vr(G+10,2)}\nv_add_f32 v{G+4}, v{GM}, v{GM+2}')
    a(f'v_cmp_u_f32 s[60:61], v{G}, v{G+1}\nv_cmp_u_f32 s[62:63], v{G+2}, v{G+3}\nv_cmp_u_f32 vcc, v{G+4}, v{G+4}')
    a(f'v_cvt_pk_bf16_f32 v{G+8}, v{G}, v{G+1}\nv_cvt_pk_bf16_f32 v{G+9}, v{G+2}, v{G+3}\nv_cvt_pk_bf16_f32 v{G+10}, v{G+4}, v{G+4}')
    a('s_or_b64 s[60:61], s[60:61], s[62:63]\ns_or_b64 vcc, vcc, s[60:61]')
    retry_tail(a, again, ok)
    stamp(a, 4)
    if TIMING: a(f's_sub_u32 s{sTS+22}, s33, s{sBUD}')
    unpack(a, G, G+1, G+8); unpack(a, G+2, G+3, G+9); a(f'v_lshlrev_b32 v{G+4}, 16, v{G+10}')
    for r in range(5): a(f'v_mul_f32 v{G+r}, s35, v{G+r}')
    a(f'v_cvt_pk_bf16_f32 v{G+8}, v{G}, v{G+1}\nv_cvt_pk_bf16_f32 v{G+9}, v{G+2}, v{G+3}\nv_cvt_pk_bf16_f32 v{G+10}, v{G+4}, v{G+4}')
    unpack(a, G, G+1, G+8); unpack(a, G+2, G+3, G+9); a(f'v_lshlrev_b32 v{G+4}, 16, v{G+10}')
    m, t = G+8, G+9
    a(f'v_max3_f32 v{m}, v{G}, v{G+1}, v{G+2}\nv_max3_f32 v{m}, v{m}, v{G+3}, v{G+4}')
    a(f'v_max_f32_dpp v{m}, v{m}, v{m} row_ror:8 row_mask:0xf bank_mask:0xf')
    for w in (16, 32): a(f'v_mov_b32 v{t}, v{m}\nv_permlane{w}_swap_b32 v{m}, v{t}\nv_max_f32 v{m}, v{m}, v{t}')
    a(f'v_mul_f32 v{m}, 0xbfb8aa3b, v{m}')
    for r in range(5): a(f'v_fma_f32 v{G+r}, v{G+r}, s34, v{m}')
    for r in range(5): a(f'v_exp_f32 v{G+r}, v{G+r}')
    a(f'v_cvt_pk_bf16_f32 v{PB}, v{G}, v{G+1}\nv_cvt_pk_bf16_f32 v{PB+1}, v{G+2}, v{G+3}')
    a(f'v_mov_b32_dpp v{t}, v{G+4} row_ror:8 row_mask:0xf bank_mask:0xf')
    a(f'v_mov_b32_dpp v{PB+2}, v{PB} row_ror:8 row_mask:0xf bank_mask:0xf\nv_mov_b32_dpp v{PB+3}, v{PB+1} row_ror:8 row_mask:0xf bank_mask:0xf')
    a(f'v_cvt_pk_bf16_f32 v{PM}, v{G+4}, v{t}')
    a(f'v_add_f32 v{G}, v{G}, v{G+1}\nv_add_f32 v{G+2}, v{G+2}, v{G+3}')
    a(f'v_mfma_f32_16x16x32_bf16 {vr(O,4)}, {vr(VX,4)}, {vr(PB,4)}, 0')
    a(f'v_add_f32 v{G}, v{G}, v{G+2}\nv_add_f32 v{m}, v{G}, v{G+4}')
    a(f'v_mfma_f32_16x16x32_bf16 {vr(O+4,4)}, {vr(VX+4,4)}, {vr(PB,4)}, 0')
    a(f'v_add_f32_dpp v{m}, v{m}, v{m} row_ror:8 row_mask:0xf bank_mask:0xf')
    a(f'v_mfma_f32_16x16x32_bf16 {vr(O,4)}, {vr(VM0,4)}, {vr(PM,4)}, {vr(O,4)}')
    a(f'v_mov_b32 v{t}, v{m}\nv_permlane16_swap_b32 v{m}, v{t}\nv_add_f32 v{m}, v{m}, v{t}')
    a(f'v_mfma_f32_16x16x32_bf16 {vr(O+4,4)}, {vr(VM1,4)}, {vr(PM,4)}, {vr(O+4,4)}')
    a(f'v_mov_b32 v{t}, v{m}\nv_permlane32_swap_b32 v{m}, v{t}\nv_add_f32 v{m}, v{m}, v{t}\nv_rcp_f32 v{m}, v{m}')
    for r in range(8): a(f'v_mul_f32 v{O+r}, v{O+r}, v{m}')
    for r in range(4): a(f'v_cvt_pk_bf16_f32 v{G+r}, v{O+2*r}, v{O+2*r+1}')
    a(f'buffer_store_dwordx4 {vr(G,4)}, v{vOst}, {R}, s{sSLOT} offen{sc}')
    stamp(a, 5)
    if OACK: a('s_waitcnt vmcnt(0)')
    a('s_barrier')
    gather_mm(a, vGO, [3], L_M, None, None, 6)
    a('s_waitcnt lgkmcnt(0)\ns_barrier')
    stamp(a, 7)
    a('s_barrier')
    ts_flush(a, 8, 0); ts_flush(a, 4, 2, 8)
    a('s_barrier')
    step_end(a, loop)

def helper(a, w, sc, done):
    R = f's[{sRING}:{sRING+3}]'; W = f's[{sWS}:{sWS+3}]'
    A0, A1, A2, A3, A4, T = 152, 153, 154, 155, 156, 160
    B = 64
    a(f'v_and_b32 v{T}, 15, v0\nv_lshrrev_b32 v{T+1}, 4, v0\nv_bfe_u32 v{T+2}, v0, 5, 1\nv_bfe_u32 v{T+3}, v0, 4, 1\nv_bfe_u32 v{T+4}, v0, 1, 3\nv_and_b32 v{T+5}, 1, v0')
    if w == 1:
        a(f'v_and_b32 v{T+6}, 7, v0\nv_mul_u32_u24 v{A0}, 144, v{T+6}\nv_lshl_add_u32 v{A0}, v{T+2}, 6, v{A0}\nv_lshl_add_u32 v{A0}, v{T+3}, 4, v{A0}')
        a(f'v_lshlrev_b32 v{A1}, 4, v{T+6}\nv_lshl_add_u32 v{A1}, v{T+1}, 7, v{A1}\nv_mov_b32 v{T+7}, {OOB}\nv_cmp_lt_u32 vcc, 7, v{T}\nv_cndmask_b32 v{A1}, v{A1}, v{T+7}, vcc')
        a(f'v_mul_u32_u24 v{A2}, 576, v{T+2}\nv_and_b32 v{T+6}, 31, v0\nv_lshl_add_u32 v{A2}, v{T+6}, 2, v{A2}\nv_add_u32 v{A2}, {L_ACC+2*MS}, v{A2}')
        for k in range(4): a(f'v_add_u32 v{224+k}, {1152*k}, v{A2}')
        a(f'v_mul_u32_u24 v{A3}, 144, v{T+4}\nv_lshl_add_u32 v{A3}, v{T+1}, 5, v{A3}\nv_lshl_add_u32 v{A3}, v{T+5}, 4, v{A3}')
        a(f's_lshl_b32 s{sT}, s{sC}, 2\ns_add_u32 s{sT}, s{sT}, s{sX}\ns_lshl_b32 s{sT}, s{sT}, 10\ns_add_u32 s{sT}, s{sT}, {R_P}')
        a(f'v_lshlrev_b32 v236, 4, v0\nv_add_u32 v236, s{sT}, v236\nv_lshlrev_b32 v{T+8}, 3, v0')
        a(f's_lshr_b32 s{sT}, s{sC}, 1\ns_lshl_b32 s{sT}, s{sT}, 10\ns_and_b32 s{sT2}, s{sC}, 1\ns_lshl_b32 s{sT2}, s{sT2}, 7\ns_add_u32 s{sT}, s{sT}, s{sT2}')
        a(f's_lshl_b32 s{sT2}, s{sX}, 14\ns_add_u32 s{sT}, s{sT}, s{sT2}')
        a(f'v_lshlrev_b32 v237, 3, v{T}\nv_lshl_add_u32 v237, v{T+1}, 8, v237\nv_add_u32 v237, s{sT}, v237\nv_add_u32 v238, {R_O}, v237')
        a(f's_mul_i32 s{sT}, s{sCU}, {S_STRIDE}\ns_add_u32 s{sT}, s{sT}, {R_S}\nv_lshlrev_b32 v239, 4, v0\nv_add_u32 v239, s{sT}, v239')
        a(f'v_lshlrev_b32 v{A2}, 2, v0\nv_add_u32 v{A2}, s{sT}, v{A2}')
        for r in range(4): a(f'v_mov_b32 v{232+r}, -1')
    if w == 2:
        a(f's_lshr_b32 s{sT}, s{sC}, 1\ns_lshl_b32 s{sT}, s{sT}, 10\ns_and_b32 s{sT2}, s{sC}, 1\ns_lshl_b32 s{sT2}, s{sT2}, 7\ns_add_u32 s{sT}, s{sT}, s{sT2}')
        a(f's_lshl_b32 s{sT2}, s{sX}, 14\ns_add_u32 s{sT}, s{sT}, s{sT2}')
        a(f'v_lshlrev_b32 v{A0}, 3, v{T}\nv_lshl_add_u32 v{A0}, v{T+1}, 8, v{A0}\nv_add_u32 v{A0}, s{sT}, v{A0}\nv_add_u32 v{A4}, {R_O}, v{A0}')
        a(f's_lshl_b32 s{sT}, s{sC}, 12\ns_add_u32 s{sT}, s{sT}, {R_P}\nv_lshlrev_b32 v{A1}, 4, v0\nv_add_u32 v{A1}, s{sT}, v{A1}')
        a(f's_lshl_b32 s{sT}, s{sX}, 10\nv_add_u32 v{A3}, s{sT}, v{A1}')
        a(f's_mul_i32 s{sT}, s{sCU}, {S_STRIDE}\ns_add_u32 s{sT}, s{sT}, {R_S}\nv_lshlrev_b32 v{A2}, 4, v0\nv_add_u32 v{A2}, s{sT}, v{A2}')
        a(f'v_lshlrev_b32 v{T+6}, 2, v0\nv_add_u32 v{T+6}, s{sT}, v{T+6}')
        a(f'v_mul_u32_u24 v{T+8}, 144, v{T+4}\nv_lshl_add_u32 v{T+8}, v{T+1}, 5, v{T+8}\nv_lshl_add_u32 v{T+8}, v{T+5}, 4, v{T+8}')
        for r in range(4): a(f'v_mov_b32 v{B+32+r}, -1')
        a('s_load_dwordx2 s[60:61], s[0:1], 8\ns_waitcnt lgkmcnt(0)')
        srd(a, sW, 60, 16384)
        a(f'v_lshlrev_b32 v{T+7}, 11, v{T+4}\nv_lshl_add_u32 v{T+7}, v{T+1}, 4, v{T+7}\nv_lshl_add_u32 v{T+7}, v{T+5}, 3, v{T+7}\ns_lshl_b32 s{sT}, s{sC}, 6')
        a(f'buffer_load_dwordx2 {vr(B,2)}, v{T+7}, s[{sW}:{sW+3}], s{sT} offen\ns_waitcnt vmcnt(0)')
        a(f'buffer_store_dwordx2 {vr(B,2)}, v{A0}, {R}, 0 offen{sc}')
    ksc = ' sc1' if FUSED else ''
    def kv_wait(target):
        lp = a.label('kw'); ok = a.label('ko')
        return (f's_lshl_b32 s{sT2}, s{sT2}, 2\ns_add_u32 s{sT2}, s{sT2}, s{sX}\ns_lshl_b32 s{sT2}, s{sT2}, 7\ns_add_u32 s{sT2}, s{sT2}, {CTL-RING+C_KV}\n'
                f'v_mov_b32 v{B+5}, 0\n{lp}:\nbuffer_load_dword v{B+4}, v{B+5}, {R}, s{sT2} offen sc1\ns_waitcnt vmcnt(0)\nv_readfirstlane_b32 s{sT}, v{B+4}\n'
                f's_cmp_ge_u32 s{sT}, {target}\ns_cbranch_scc1 {ok}\ns_cmp_eq_u32 s{sBUD}, 0\ns_cbranch_scc1 {ok}\ns_sub_u32 s{sBUD}, s{sBUD}, 1\ns_branch {lp}\n{ok}:')
    def kv_dma():
        a(f's_mov_b32 m0, s33\ns_add_u32 s{sT}, s{sSEG}, {VT-KF}')
        a(f'buffer_load_dwordx4 v{A0}, {W}, s{sSEG} offen{ksc} lds\nbuffer_load_dwordx4 v{A0}, {W}, s{sSEG} offen offset:1024{ksc} lds')
        a(f's_add_u32 m0, s33, 2048\ns_xor_b32 s33, s33, {L_KX ^ (L_KX+4096)}')
        a(f'buffer_load_dwordx4 v{A0}, {W}, s{sT} offen{ksc} lds\nbuffer_load_dwordx4 v{A0}, {W}, s{sT} offen offset:1024{ksc} lds')
        if 'n' not in EXPF: a(f's_add_u32 s{sSEG}, s{sSEG}, {256*1024}')
    def l2_prefetch():
        for base in (60, 62):
            for k in range(32): a(f's_load_dword s64, s[{base}:{base+1}], {64*k}')
            a(f's_add_u32 s{base}, s{base}, {256*1024}\ns_addc_u32 s{base+1}, s{base+1}, 0')
    def zero(off, n):
        for k in range(-(-n // 1024)):
            if n - k*1024 < 1024: a(f's_mov_b64 exec, {hex((1 << ((n - k*1024)//16)) - 1)}')
            a(f'ds_write_b128 v{A0}, {vr(B,4)} offset:{off+1024*k}')
        a('s_mov_b64 exec, -1')
    if w == 3:
        a(f'v_lshlrev_b32 v{A0}, 4, v0')
        for r in range(4): a(f'v_mov_b32 v{B+r}, 0')
        a(f's_add_u32 s60, s{sWS}, s{sSEG}\ns_addc_u32 s61, s{sWS+1}, 0\ns_add_u32 s60, s60, {2*256*1024}\ns_addc_u32 s61, s61, 0')
        a(f's_add_u32 s62, s60, {VT-KF}\ns_addc_u32 s63, s61, 0')
        if FUSED: a(f's_mov_b32 s{sT2}, 0'); a(kv_wait(KV0_TARGET))
        a(f's_mov_b32 s33, {L_KX}'); kv_dma(); kv_dma()
        if 'f' in EXPF: l2_prefetch()
        a('s_waitcnt vmcnt(0)')
    a('s_barrier')
    loop = a.label(f'w{w}')
    a(f'{loop}:')
    gather_mm(a, vGX, [0, 1, 2], L_ACC, None, lambda: a('s_waitcnt lgkmcnt(0)\ns_barrier'))
    if w != 1: a(f's_cmp_eq_u32 s{sSTEP}, {NSTEP-1}\ns_cbranch_scc1 {done}')
    a('s_waitcnt lgkmcnt(0)\ns_barrier')
    if w == 1:
        for k in range(4):
            b = B + 12*k
            a(f'ds_read_b128 {vr(b,4)}, v{A0} offset:{L_ACC+MS+1152*k}\nds_read_b128 {vr(b+4,4)}, v{A0} offset:{L_ACC+MS+1152*k+32}')
            a(f'ds_read2_b32 {vr(b+8,2)}, v{224+k} offset1:36\nds_read2_b32 {vr(b+10,2)}, v{224+k} offset0:72 offset1:108')
        a('s_waitcnt lgkmcnt(0)')
        pkadd(a, B, B+12, 12); pkadd(a, B+24, B+36, 12); pkadd(a, B, B+24, 12)
        for r in range(6): a(f'v_cvt_pk_bf16_f32 v{B+12+r}, v{B+2*r}, v{B+2*r+1}')
        kvpub = (f's_add_u32 s{sT}, s{sKM}, {VM-KM}\nbuffer_store_dwordx4 {vr(B+12,4)}, v{A1}, {W}, s{sKM} offen sc1\n'
                 f'buffer_store_dwordx2 {vr(B+16,2)}, v{T+8}, {W}, s{sT} offen sc1\ns_add_u32 s{sKM}, s{sKM}, 65536')
        last = a.label('last')
        memsig = (f's_lshr_b32 s{sT}, s{sSTEP}, 3\ns_lshl_b32 s{sT}, s{sT}, 2\ns_add_u32 s{sT}, s{sT}, s{sX}\ns_lshl_b32 s{sT}, s{sT}, 7\n'
                  f's_add_u32 s{sT}, s{sT}, {CTL-RING+C_MEM}\nv_mov_b32 v{B}, 1\nv_mov_b32 v{B+1}, 0\ns_mov_b64 exec, 1\n'
                  f'buffer_atomic_add v{B}, v{B+1}, {R}, s{sT} offen sc1\ns_mov_b64 exec, -1') if FUSED else ''
        COLD.append(f'{last}:\n{kvpub}\ns_waitcnt vmcnt(0)\n{memsig}\ns_branch {done}2')
        a(f's_cmp_eq_u32 s{sSTEP}, {NSTEP-1}\ns_cbranch_scc1 {last}')
    a('s_barrier')
    gather_mm(a, vGO, [3], L_M)
    a('s_waitcnt lgkmcnt(0)\ns_barrier')
    if w != 2: a('s_barrier')
    if w == 3:
        if FUSED:
            kw = a.label('kvw'); back = a.label('kvb')
            a(f's_and_b32 s{sT}, s{sSTEP}, 7\ns_cmp_eq_u32 s{sT}, 6\ns_cbranch_scc1 {kw}\n{back}:')
            COLD.append(f'{kw}:\ns_cmp_eq_u32 s{sSTEP}, 62\ns_cbranch_scc1 {back}\ns_add_u32 s{sT2}, s{sSTEP}, 2\ns_lshr_b32 s{sT2}, s{sT2}, 3\n{kv_wait(8)}\ns_branch {back}')
        kv_dma()
        if 'f' in EXPF: l2_prefetch()
    if w == 1:
        Z = 232
        a(f'buffer_store_dwordx4 {vr(Z,4)}, v{Z+4}, {R}, s{sRST} offen sc1')
        if 'k' not in EXPF: a(kvpub)
        a(f'buffer_store_dwordx2 {vr(Z,2)}, v{Z+5}, {R}, s{sRST} offen{sc}\nbuffer_store_dwordx2 {vr(Z,2)}, v{Z+6}, {R}, s{sRST} offen{sc}')
        a(f'buffer_store_dwordx4 {vr(Z,4)}, v{Z+7}, {R}, s{sRST} offen{sc}\nbuffer_store_dword v{Z}, v{A2}, {R}, s{sRST} offen offset:1024{sc}')
        a('s_waitcnt vmcnt(0)')
        if FUSED:
            sig = a.label('sig'); back = a.label('sb')
            a(f's_and_b32 s{sT}, s{sSTEP}, 7\ns_cmp_eq_u32 s{sT}, 7\ns_cbranch_scc1 {sig}\n{back}:')
            COLD.append(f'{sig}:\n{memsig}\ns_branch {back}')
    if w == 2:
        for k in range(4): a(f'ds_read_b128 {vr(B+4*k,4)}, v{T+8} offset:{L_M+1152*k}')
        a('s_waitcnt lgkmcnt(2)'); pkadd(a, B, B+4, 4); a('s_waitcnt lgkmcnt(0)'); pkadd(a, B+8, B+12, 4); pkadd(a, B, B+8, 4)
        a(f'buffer_store_dwordx4 {vr(B,4)}, v{A3}, {R}, s{sSLOT} offen sc1\ns_barrier')
        stamp(a, 0)
        if PACK: a('s_waitcnt vmcnt(0)')
        stamp(a, 2)
        if TIMING: a(f's_mov_b32 s33, s{sBUD}')
        again = a.label('p'); ok = a.label('po')
        a(f'{again}:')
        for i in range(4): a(f'buffer_load_dwordx4 {vr(B+4*i,4)}, v{A1}, {R}, s{sSLOT} offen offset:{1024*i} sc1')
        a('s_waitcnt vmcnt(2)')
        a(f'v_pk_add_f32 {vr(B,2)}, {vr(B,2)}, {vr(B+4,2)}\nv_pk_add_f32 {vr(B+2,2)}, {vr(B+2,2)}, {vr(B+6,2)}\ns_waitcnt vmcnt(0)')
        a(f'v_pk_add_f32 {vr(B+8,2)}, {vr(B+8,2)}, {vr(B+12,2)}\nv_pk_add_f32 {vr(B+10,2)}, {vr(B+10,2)}, {vr(B+14,2)}')
        a(f'v_pk_add_f32 {vr(B,2)}, {vr(B,2)}, {vr(B+8,2)}\nv_pk_add_f32 {vr(B+2,2)}, {vr(B+2,2)}, {vr(B+10,2)}')
        a(f'v_cmp_u_f32 s[60:61], v{B}, v{B+1}\nv_cmp_u_f32 vcc, v{B+2}, v{B+3}')
        a(f'v_cvt_pk_bf16_f32 v{B+4}, v{B}, v{B+1}\nv_cvt_pk_bf16_f32 v{B+5}, v{B+2}, v{B+3}\ns_or_b64 vcc, vcc, s[60:61]')
        retry_tail(a, again, ok)
        a(f'buffer_store_dwordx2 {vr(B+4,2)}, v{A0}, {R}, s{sNEXT} offen{sc}')
        stamp(a, 1)
        if XACK: a('s_waitcnt vmcnt(0)')
        stamp(a, 3)
        if TIMING: a(f's_mov_b32 s{sTS+8}, s{sBUD}')
        if TIMING: a(f's_sub_u32 s{sTS+10}, s33, s{sBUD}')
        ts_flush(a, 6, 1)
    a('s_barrier')
    step_end(a, loop)

def chain_body(a, fin):
    common_setup(a)
    safe = a.label('safe')
    a(f's_cmp_eq_u32 s{sMODE}, 2\ns_cbranch_scc1 {safe}')
    for sc in ('', ' sc1'):
        if sc: a(f'{safe}:')
        done = a.label('done'); lw = [a.label('wv') for _ in range(4)]
        for w in range(1, 4): a(f's_cmp_eq_u32 s3, {w}\ns_cbranch_scc1 {lw[w]}')
        wave0(a, sc, done)
        for w in range(1, 4):
            a(f'{lw[w]}:'); helper(a, w, sc, done)
        a(f'{done}:\ns_waitcnt lgkmcnt(0)\ns_barrier\n{done}2:\ns_branch {fin}')

def chain_kernel(a, label, force_safe=False, worker=None):
    kernel_begin(a, label); end = a.label('end'); load = a.label('load'); wm = a.label('wm')
    a(f's_cmp_ge_u32 s2, 256\ns_cbranch_scc1 {end}')
    a('v_lshrrev_b32 v1, 6, v0\nv_readfirstlane_b32 s3, v1\nv_and_b32 v0, 63, v0')
    a('s_load_dwordx2 s[4:5], s[0:1], 112\ns_waitcnt lgkmcnt(0)')
    if PROF: a('s_memrealtime s[70:71]\ns_memtime s[78:79]')
    roles(a, end, 256)
    a(f's_cmp_ge_u32 s{sX}, 4\ns_cbranch_scc1 {wm}\ns_cmp_ge_u32 s{sC}, 32\ns_cbranch_scc1 {wm}\n{load}:')
    load_weights(a)
    if PROF: a('s_memrealtime s[72:73]')
    a(f'{wm}:')
    wl = a.label('worker') if worker else None
    wait_mode(a, load, end, wl)
    if PROF: a('s_memrealtime s[74:75]')
    if force_safe: a(f's_mov_b32 s{sMODE}, 2')
    fin = a.label('fin')
    chain_body(a, fin)
    a(f'{fin}:')
    if PROF:
        a('s_memrealtime s[76:77]\ns_memtime s[80:81]\ns_waitcnt lgkmcnt(0)')
        for i in range(6): a(f'v_writelane_b32 v250, s{70+2*i}, {i}')
        a(f's_lshl_b32 s{sT}, s{sCU}, 13\ns_add_u32 s{sT}, s{sT}, {TS-KF+3*2048}\nv_lshlrev_b32 v251, 2, v0\ns_mov_b64 exec, 0xff')
        a(f'buffer_store_dword v250, v251, s[{sWS}:{sWS+3}], s{sT} offen')
    a(f'{end}:\ns_waitcnt vmcnt(0)\ns_endpgm')
    if worker:
        a(f'{wl}:'); worker(a)
        a('s_waitcnt vmcnt(0)\ns_endpgm')
    kernel_desc(a, label, 512, 256)
    return (label, 256, 256, CHAIN_LDS)
```

```python
from asmlib import *
from layout import *
from gemm import *

def common_entry(a, ngrid, end):
    a(f's_cmp_ge_u32 s2, {ngrid}\ns_cbranch_scc1 {end}')
    a('v_lshrrev_b32 v1, 6, v0\nv_readfirstlane_b32 s3, v1\nv_and_b32 v0, 63, v0')

def qkv_kernel(a, label, ncol0=0, ncol=48):
    ng = 8 * ncol
    kernel_begin(a, label)
    end = a.label('end')
    common_entry(a, ng, end)
    a('s_load_dwordx2 s[4:5], s[0:1], 112')
    a('s_and_b32 s8, s2, 7\ns_lshr_b32 s9, s2, 3\ns_and_b32 s10, s9, 7\ns_lshr_b32 s9, s9, 3\ns_lshl_b32 s9, s9, 3\ns_add_u32 s9, s9, s8')
    a(f's_add_u32 s9, s9, {ncol0}')
    a('s_lshr_b32 s11, s9, 4\ns_and_b32 s9, s9, 15')
    a('s_lshl_b32 s12, s11, 3\ns_add_u32 s12, s12, 16\ns_load_dwordx2 s[6:7], s[0:1], s12\ns_waitcnt lgkmcnt(0)')
    srd_off(a, S_ASRD, 4, H1F, 4*MB)
    srd(a, S_WSRD, 6, 8*MB)
    a(f's_lshl_b32 s12, s11, 24\ns_add_u32 s12, s12, {QF}\ns_add_u32 s36, s4, s12\ns_addc_u32 s37, s5, 0\ns_mov_b32 s38, {16*MB}\ns_mov_b32 s39, 0x00020000')
    g0 = Gemm(256, 256, 4, False, vbase=8); g1 = Gemm(256, 256, 4, True, vbase=8)
    g0.setup(a, 0, 3, 64, 8192); g1.KB = 64; g1.swave = 3
    a(f's_mul_i32 s{S_AOFF}, s10, {8*64*1024}\ns_lshl_b32 s{S_WOFF}, s9, 9\ns_mov_b32 s{S_CNT}, 32')
    a(f's_lshr_b32 s12, s3, 1\ns_lshl_b32 s12, s12, 2\ns_lshl_b32 s13, s10, 3\ns_add_u32 s12, s12, s13\ns_lshl_b32 s12, s12, 18')
    a(f's_and_b32 s13, s3, 1\ns_lshl_b32 s13, s13, 3\ns_lshl_b32 s14, s9, 4\ns_add_u32 s13, s13, s14\ns_lshl_b32 s13, s13, 10\ns_add_u32 s12, s12, s13')
    a('v_lshlrev_b32 v2, 4, v0')
    g0.prologue(a)
    lv = a.label('vt'); le = a.label('epi')
    a(f's_cmp_eq_u32 s11, 2\ns_cbranch_scc1 {lv}')
    g0.main(a)
    a(f's_branch {le}\n{lv}:')
    g1.main(a)
    a(f'{le}:')
    g0.epi_bf16(a, 36, 12, 2, 256*1024)
    a(f's_waitcnt vmcnt(0)\n{end}:\ns_endpgm')
    kernel_desc(a, label, 512, 256)
    return (label, ng, 256, g0.lds)

KINDS = {
    'wo':  (OF, 256, 40, 2048, 4096),
    'ff1': (H2F, 64, 64, 7168, 1024),
    'ff2': (FF, 224, 72, 2048, 3584),
}
def gemm_task(a, g, kind, srow, scol, wait=None):
    aoff, KB, slot, NB, K = KINDS[kind]
    mt, nt = g.mt, g.nt
    a(f's_load_dwordx2 s[6:7], s[0:1], {slot}')
    if kind == 'ff2': a('s_load_dwordx2 s[14:15], s[0:1], 96')
    srd_off(a, S_ASRD, 4, aoff, 64*KB*1024)
    g.setup(a, 0, 3, KB, NB)
    a('s_waitcnt lgkmcnt(0)')
    srd(a, S_WSRD, 6, K*NB)
    a(f's_mul_i32 s{S_AOFF}, s{srow}, {g.TM//32*KB*1024}\ns_mul_i32 s{S_WOFF}, s{scol}, {g.TN*2}\ns_mov_b32 s{S_CNT}, {K//32}')
    a(f's_lshr_b32 s16, s3, {g.WN-1}\ns_mul_i32 s16, s16, {mt}\ns_mul_i32 s18, s{srow}, {g.TM//32}\ns_add_u32 s16, s16, s18')
    a(f's_and_b32 s17, s3, {g.WN-1}\ns_mul_i32 s17, s17, {2*nt}\ns_mul_i32 s18, s{scol}, {g.TN//16}\ns_add_u32 s17, s17, s18')
    a('v_lshlrev_b32 v2, 4, v0')
    if wait:
        g.prologue_w(a); wait()
    if kind == 'ff1':
        g.prologue(a)
        srd_off(a, 36, 4, FF, 64*224*1024)
        a(f's_mul_i32 s12, s16, {224*1024}\ns_lshl_b32 s18, s17, 10\ns_add_u32 s12, s12, s18')
        g.main(a)
        g.epi_bf16(a, 36, 12, 2, 224*1024, relu=True)
        return g.vend
    srd_off(a, 36, 4, X1F, 4*MB)
    srd_off(a, 32, 4, MODF + (2 if kind == 'wo' else 5)*4096, 4096)
    a('s_lshl_b32 s12, s16, 16\ns_lshl_b32 s18, s17, 10\ns_add_u32 s12, s12, s18\ns_lshl_b32 s13, s17, 6')
    a('v_lshrrev_b32 v3, 5, v0\nv_lshlrev_b32 v4, 4, v3\nv_lshlrev_b32 v3, 5, v3')
    if kind == 'ff2':
        srd(a, 28, 14, 4*MB)
        a('s_lshl_b32 s19, s16, 16\ns_lshl_b32 s18, s17, 5\ns_add_u32 s19, s19, s18')
        a('v_and_b32 v5, 31, v0\nv_lshlrev_b32 v5, 11, v5\nv_add_u32 v4, v4, v5')
    R0 = (g.vend + 3) // 4 * 4
    args = (a, 36, 32, 36, 12, 2, 13, 3, R0) if kind == 'wo' else (a, 36, 32, 28, 12, 2, 13, 3, R0, True, 19, 4)
    g.epi_res(*args, part='load')
    g.prologue(a)
    g.main(a)
    return g.epi_res(*args, part='math')

def gemm_kernel(a, label, kind, TM, TN, S):
    N = KINDS[kind][3] // 2
    nr, nc = 2048 // TM, N // TN
    ng = nr * nc
    kernel_begin(a, label)
    end = a.label('end')
    common_entry(a, ng, end)
    a('s_load_dwordx2 s[4:5], s[0:1], 112')
    per = nr // 8
    a(f's_and_b32 s8, s2, 7\ns_mul_i32 s8, s8, {per}\ns_lshr_b32 s9, s2, 3\ns_and_b32 s10, s9, {per-1}\ns_add_u32 s8, s8, s10\ns_lshr_b32 s9, s9, {per.bit_length()-1}')
    a('s_waitcnt lgkmcnt(0)')
    g = Gemm(TM, TN, S, False, vbase=8)
    nv = gemm_task(a, g, kind, 8, 9)
    a(f's_waitcnt vmcnt(0)\n{end}:\ns_endpgm')
    nv = (nv + 7) // 8 * 8
    kernel_desc(a, label, nv + 16 * g.mt * g.nt, nv)
    return (label, ng, 256, g.lds)
```

```python
from asmlib import *
from layout import *
from gemm import *
from k_gemm import gemm_task
from k_small import ln_body, att_body
import k_chain as kc

sG, sI, sB, sR, sBUD, sU, sU2, sMAT, sROW, sCOL, sSIG = range(76, 87)
sCTL = 88
sTSR = 92
PROF = False
SC = ' sc1'
nstamp = [0]

def wstamp(a, k):
    if not PROF: return
    a(f's_memrealtime s[96:97]\ns_memtime s[68:69]\ns_lshl_b32 s98, s{sG}, 5\ns_add_u32 s98, s98, s{sI}\ns_lshl_b32 s98, s98, 10\ns_lshr_b32 s99, s{sB}, 2\ns_lshl_b32 s99, s99, 9\ns_add_u32 s98, s98, s99')
    a('s_waitcnt lgkmcnt(0)')
    for i, r in enumerate((96, 68, 60, 62, 64, 66)): a(f'v_writelane_b32 v252, s{r}, {i}')
    a(f'v_lshlrev_b32 v253, 2, v0\ns_mov_b64 exec, 0xff\nbuffer_store_dword v252, v253, s[{sTSR}:{sTSR+3}], s98 offen offset:{32*k}\ns_mov_b64 exec, -1')
def st(a, r):
    if PROF: a(f's_memtime s[{r}:{r+1}]')

def signal(a):
    skip = a.label('sg')
    st(a, 66)
    a(f's_waitcnt vmcnt(0)\ns_barrier\ns_cmp_lg_u32 s3, 0\ns_cbranch_scc1 {skip}')
    a(f'v_mov_b32 v1, 1\nv_mov_b32 v2, 0\ns_mov_b64 exec, 1\nbuffer_atomic_add v1, v2, s[{sCTL}:{sCTL+3}], s{sSIG} offen sc1\ns_mov_b64 exec, -1\n{skip}:')

def wait(a, prep, nl):
    skip = a.label('ws'); lp = a.label('wl'); ok = a.label('wo')
    a(f's_cmp_lg_u32 s3, 0\ns_cbranch_scc1 {skip}')
    prep()
    a(f's_mov_b64 exec, {(1 << nl) - 1}\n{lp}:\nbuffer_load_dword v3, v1, s[{sCTL}:{sCTL+3}], 0 offen sc1\ns_waitcnt vmcnt(0)')
    a(f'v_cmp_lt_u32 vcc, v3, v2\ns_cbranch_vccz {ok}\ns_cmp_eq_u32 s{sBUD}, 0\ns_cbranch_scc1 {ok}\ns_sub_u32 s{sBUD}, s{sBUD}, 1\ns_branch {lp}')
    a(f'{ok}:\ns_mov_b64 exec, -1\n{skip}:\ns_barrier')
    st(a, 60)

def stage_sig(a, k): a(f's_lshl_b32 s{sSIG}, s{sB}, 10\ns_add_u32 s{sSIG}, s{sSIG}, {kc.C_ST + 128*k}')
def stage_wait(a, n=32):
    wait(a, lambda: a(f'v_mov_b32 v1, s{sSIG}\nv_mov_b32 v2, {n}'), 1)

def qkv_task(a, TN):
    g0, g1 = [Gemm(256, TN, 4, vt, vbase=8, osc=SC) if TN == 256 else GemmD(256, TN, vt, vbase=8, osc=SC) for vt in (False, True)]
    st(a, 60)
    a(f's_lshl_b32 s12, s{sMAT}, 3\ns_add_u32 s12, s12, 16\ns_load_dwordx2 s[6:7], s[0:1], s12')
    srd_off(a, S_ASRD, 4, H1F, 4*MB)
    a(f's_lshl_b32 s12, s{sMAT}, 24\ns_add_u32 s12, s12, {QF}\ns_add_u32 s36, s4, s12\ns_addc_u32 s37, s5, 0\ns_mov_b32 s38, {16*MB}\ns_mov_b32 s39, 0x00020000')
    g0.setup(a, 0, 3, 64, 8192); g1.KB = 64; g1.swave = 3
    a('s_waitcnt lgkmcnt(0)')
    srd(a, S_WSRD, 6, 8*MB)
    a(f's_mul_i32 s{S_AOFF}, s{sROW}, {8*64*1024}\ns_mul_i32 s{S_WOFF}, s{sCOL}, {TN*2}\ns_mov_b32 s{S_CNT}, 32')
    a(f's_lshr_b32 s12, s3, {g0.WN-1}\ns_mul_i32 s12, s12, {g0.mt}\ns_lshl_b32 s13, s{sROW}, 3\ns_add_u32 s12, s12, s13\ns_lshl_b32 s12, s12, 18')
    a(f's_and_b32 s13, s3, {g0.WN-1}\ns_mul_i32 s13, s13, {2*g0.nt}\ns_mul_i32 s14, s{sCOL}, {TN//16}\ns_add_u32 s13, s13, s14\ns_lshl_b32 s13, s13, 10\ns_add_u32 s12, s12, s13')
    a('v_lshlrev_b32 v2, 4, v0')
    g0.prologue(a)
    lv = a.label('vt'); le = a.label('epi')
    a(f's_cmp_eq_u32 s{sMAT}, 2\ns_cbranch_scc1 {lv}')
    g0.main(a)
    a(f's_branch {le}\n{lv}:')
    g1.main(a)
    a(f'{le}:')
    g0.epi_bf16(a, 36, 12, 2, 256*1024)

def kv_sig(a): a(f's_lshl_b32 s{sSIG}, s{sROW}, 2\ns_add_u32 s{sSIG}, s{sSIG}, s{sG}\ns_lshl_b32 s{sSIG}, s{sSIG}, 7\ns_add_u32 s{sSIG}, s{sSIG}, {kc.C_KV}')
def q_sig(a): a(f's_lshl_b32 s{sSIG}, s{sROW}, 7\ns_add_u32 s{sSIG}, s{sSIG}, {kc.C_Q}')

def worker(a):
    a(f's_sub_u32 s{sG}, s{kc.sX}, 4\ns_mov_b32 s{sI}, s{kc.sC}\ns_mov_b32 s{sBUD}, 400000\ns_mov_b32 s{sB}, 0')
    srd_off(a, sCTL, 4, CTL, 65536)
    if PROF: srd_off(a, sTSR, 4, TS + MB, MB)
    wstamp(a, 0)
    a(f's_lshr_b32 s{sMAT}, s{sI}, 4\ns_add_u32 s{sMAT}, s{sMAT}, 1\ns_mov_b32 s{sROW}, 0')
    a(f's_and_b32 s{sCOL}, s{sI}, 15\ns_lshl_b32 s{sU}, s{sG}, 4\ns_add_u32 s{sCOL}, s{sCOL}, s{sU}')
    qkv_task(a, 64)
    kv_sig(a); signal(a)
    wstamp(a, 1)
    rl = a.label('round'); run = a.label('run'); r3 = a.label('r3'); r4 = a.label('r4'); kv = a.label('kv'); bat = a.label('batch')
    a(f's_mov_b32 s{sR}, 2\n{rl}:')
    a(f's_cmp_eq_u32 s{sR}, 4\ns_cbranch_scc1 {r4}\ns_mov_b32 s{sROW}, 1\ns_cmp_eq_u32 s{sR}, 2\ns_cbranch_scc1 {kv}')
    a(f's_mov_b32 s{sROW}, 5\ns_cmp_lt_u32 s{sI}, 24\ns_cbranch_scc1 {kv}')
    a(f's_mov_b32 s{sMAT}, 0\ns_bfe_u32 s{sROW}, s{sI}, 0x10002\ns_and_b32 s{sCOL}, s{sI}, 3\ns_lshl_b32 s{sU}, s{sG}, 2\ns_add_u32 s{sCOL}, s{sCOL}, s{sU}')
    q_sig(a); a(f's_branch {run}')
    a(f'{r4}:\ns_cmp_eq_u32 s{sG}, 3\ns_cbranch_scc1 {bat}')
    a(f's_mov_b32 s{sMAT}, 0\ns_lshr_b32 s{sROW}, s{sI}, 4\ns_lshl_b32 s{sU}, s{sG}, 1\ns_add_u32 s{sROW}, s{sROW}, s{sU}\ns_add_u32 s{sROW}, s{sROW}, 2\ns_and_b32 s{sCOL}, s{sI}, 15')
    q_sig(a); a(f's_branch {run}')
    a(f'{kv}:\ns_lshr_b32 s{sU}, s{sI}, 3\ns_add_u32 s{sROW}, s{sROW}, s{sU}\ns_bfe_u32 s{sMAT}, s{sI}, 0x10002\ns_add_u32 s{sMAT}, s{sMAT}, 1')
    a(f's_and_b32 s{sCOL}, s{sI}, 3\ns_lshl_b32 s{sU}, s{sG}, 2\ns_add_u32 s{sCOL}, s{sCOL}, s{sU}')
    kv_sig(a)
    a(f'{run}:')
    qkv_task(a, 256)
    signal(a)
    if PROF:
        for r in (2, 3, 4):
            l = a.label('p'); a(f's_cmp_lg_u32 s{sR}, {r}\ns_cbranch_scc1 {l}'); wstamp(a, r); a(f'{l}:')
    a(f's_add_u32 s{sR}, s{sR}, 1\ns_cmp_le_u32 s{sR}, 4\ns_cbranch_scc1 {rl}')
    a(f'{bat}:\ns_add_u32 s{sB}, s{sG}, 1\ns_and_b32 s{sB}, s{sB}, 3')
    bl = a.label('bl'); a(f'{bl}:')
    def prep():
        a(f's_lshl_b32 s{sU}, s{sB}, 9\ns_add_u32 s{sU}, s{sU}, {kc.C_MEM}\nv_lshl_add_u32 v1, v0, 7, s{sU}\nv_mov_b32 v2, 32')
        a(f's_lshl_b32 s{sU}, s{sB}, 7\ns_add_u32 s{sU}, s{sU}, {kc.C_Q}\nv_writelane_b32 v1, s{sU}, 4\nv_writelane_b32 v2, 16, 4')
    wait(a, prep, 5)
    wstamp(a, 8)
    al = a.label('al')
    a(f's_lshl_b32 s{sROW}, s{sB}, 3\ns_lshr_b32 s{sU}, s{sI}, 2\ns_add_u32 s{sROW}, s{sROW}, s{sU}')
    a(f's_and_b32 s{sCOL}, s{sI}, 3\ns_lshl_b32 s{sCOL}, s{sCOL}, 3\ns_lshl_b32 s{sU}, s3, 1\ns_add_u32 s{sCOL}, s{sCOL}, s{sU}\n{al}:')
    att_body(a, sROW, sCOL, SC)
    a(f's_add_u32 s{sCOL}, s{sCOL}, 1\ns_bitcmp1_b32 s{sCOL}, 0\ns_cbranch_scc1 {al}')
    def tile(): a(f's_lshl_b32 s{sROW}, s{sB}, 1\ns_and_b32 s{sU}, s{sI}, 1\ns_add_u32 s{sROW}, s{sROW}, s{sU}\ns_lshr_b32 s{sCOL}, s{sI}, 1')
    stage_sig(a, 0); signal(a); wstamp(a, 9); tile(); stage_wait(a)
    gemm_task(a, GemmD(128, 64, False, vbase=8, asc=SC, osc=SC, U=8), 'wo', sROW, sCOL)
    stage_sig(a, 1); signal(a); wstamp(a, 10)
    a(f's_lshl_b32 s{sROW}, s{sB}, 3\ns_lshr_b32 s{sU}, s{sI}, 2\ns_add_u32 s{sROW}, s{sROW}, s{sU}\ns_and_b32 s{sCOL}, s{sI}, 3')
    stage_wait(a)
    ln_body(a, False, sROW, sCOL, 0, SC)
    stage_sig(a, 2); signal(a); wstamp(a, 11); tile(); stage_wait(a)
    nf = a.label('nf')
    a(f's_cmp_ge_u32 s{sI}, 28\ns_cbranch_scc1 {nf}')
    gemm_task(a, Gemm(128, 256, 6, False, vbase=8, asc=SC, osc=SC, deep='d' in kc.EXPF), 'ff1', sROW, sCOL)
    a(f'{nf}:')
    stage_sig(a, 3); signal(a); wstamp(a, 12); stage_wait(a)
    gemm_task(a, GemmD(128, 64, False, vbase=8, asc=SC, osc=SC, U=8), 'ff2', sROW, sCOL)
    st(a, 66)
    if PROF: a('s_waitcnt vmcnt(0)')
    wstamp(a, 13)
    a(f's_add_u32 s{sB}, s{sB}, 4\ns_cmp_lt_u32 s{sB}, 8\ns_cbranch_scc1 {bl}')

def main_kernel(a, label, force_safe=False):
    kc.FUSED = True; EXP['ts'] = PROF
    return kc.chain_kernel(a, label, force_safe, worker)
```

```python
from asmlib import *
from layout import *

def entry(a, ngrid, end):
    a(f's_cmp_ge_u32 s2, {ngrid}\ns_cbranch_scc1 {end}')
    a('v_lshrrev_b32 v1, 6, v0\nv_readfirstlane_b32 s3, v1\nv_and_b32 v0, 63, v0')

def unpack(a, lo, hi, src):
    a(f'v_lshlrev_b32 v{lo}, 16, v{src}\nv_and_b32 v{hi}, 0xffff0000, v{src}')
def rnd2(a, x0, x1, t):
    a(f'v_cvt_pk_bf16_f32 v{t}, v{x0}, v{x1}'); unpack(a, x0, x1, t)
def rnd1(a, x):
    a(f'v_cvt_pk_bf16_f32 v{x}, v{x}, v{x}\nv_lshlrev_b32 v{x}, 16, v{x}')
def xsum_swap(a, x, t, which, op='add'):
    a(f'v_mov_b32 v{t}, v{x}\nv_permlane{which}_swap_b32 v{x}, v{t}\nv_{op}_f32 v{x}, v{x}, v{t}')

RING_BYTES = 2 * MB
def mod_kernel(a, label):
    kernel_begin(a, label); end = a.label('end'); fill = a.label('fill')
    a(f's_cmp_ge_u32 s2, 256\ns_cbranch_scc1 {end}')
    a('s_load_dwordx2 s[4:5], s[0:1], 112\ns_load_dwordx2 s[6:7], s[0:1], 80\ns_load_dwordx2 s[8:9], s[0:1], 88')
    a(f's_cmp_ge_u32 s2, 192\ns_cbranch_scc1 {fill}')
    a('v_lshrrev_b32 v2, 2, v0\nv_lshlrev_b32 v3, 1, v2')
    a('v_mul_u32_u24 v4, 12288, v2\nv_and_b32 v5, 3, v0\nv_lshlrev_b32 v5, 4, v5\nv_add_u32 v4, v4, v5')
    a('s_lshl_b32 s10, s2, 6\ns_waitcnt lgkmcnt(0)')
    srd(a, 12, 6, 2048); srd(a, 16, 8, 12288*1024); srd_off(a, 20, 4, MODF, 6*4096)
    for r in range(4):
        a(f'buffer_load_ushort v{8+r}, v3, s[12:15], 0 offen offset:{512*r}')
    for r in range(4):
        a(f'buffer_load_dwordx4 {vr(12+4*r,4)}, v4, s[16:19], s10 offen')
        if r < 3: a(f's_add_u32 s10, s10, {256*12288}')
    for i in range(8): a(f'v_mov_b32 v{32+i}, 0')
    a('s_waitcnt vmcnt(4)')
    for r in range(4):
        x = 8 + r
        a(f'v_lshlrev_b32 v{x}, 16, v{x}\nv_mul_f32 v6, 0xbfb8aa3b, v{x}\nv_exp_f32 v6, v6\nv_add_f32 v6, 1.0, v6\nv_rcp_f32 v6, v6\nv_mul_f32 v{x}, v{x}, v6')
        rnd1(a, x)
    for r in range(4):
        a(f's_waitcnt vmcnt({3-r})')
        for i in range(4):
            unpack(a, 6, 7, 12+4*r+i)
            a(f'v_fmac_f32 v{32+2*i}, v6, v{8+r}\nv_fmac_f32 v{33+2*i}, v7, v{8+r}')
    for rot in (4, 8):
        for i in range(8): a(f'v_add_f32_dpp v{32+i}, v{32+i}, v{32+i} row_ror:{rot} row_mask:0xf bank_mask:0xf')
    for w in (16, 32):
        for i in range(8): a(f'v_mov_b32 v{40+i}, v{32+i}')
        for i in range(8): a(f'v_permlane{w}_swap_b32 v{32+i}, v{40+i}')
        for i in range(8): a(f'v_add_f32 v{32+i}, v{32+i}, v{40+i}')
    a('v_lshrrev_b32 v2, 6, v0\nv_lshlrev_b32 v2, 7, v2\nv_and_b32 v3, 63, v0\nv_lshlrev_b32 v5, 5, v3\nv_add_u32 v2, v2, v5')
    a('s_mov_b64 exec, 0xf\nds_write_b128 v2, v[32:35]\nds_write_b128 v2, v[36:39] offset:16\ns_mov_b64 exec, -1')
    a('s_waitcnt lgkmcnt(0)\ns_barrier\nv_cmp_gt_u32 vcc, 32, v0\ns_and_saveexec_b64 s[24:25], vcc')
    a(f's_cbranch_execz {end}')
    a('v_lshlrev_b32 v2, 2, v0')
    for w in range(16): a(f'ds_read_b32 v{8+w}, v2 offset:{128*w}')
    a('s_waitcnt lgkmcnt(0)')
    for w in range(1, 16): a(f'v_add_f32 v8, v8, v{8+w}')
    rnd1(a, 8)
    a('s_lshr_b32 s10, s2, 5')
    a('v_add_f32 v9, 1.0, v8'); rnd1(a, 9)
    a('s_cmp_eq_u32 s10, 1\ns_cselect_b32 s11, 1, 0\ns_cmp_eq_u32 s10, 4\ns_cselect_b32 s11, 1, s11\ns_cmp_eq_u32 s11, 1\ns_cselect_b64 vcc, -1, 0')
    a('v_cndmask_b32 v8, v8, v9, vcc')
    a('v_and_b32 v2, 16, v0\nv_lshlrev_b32 v2, 2, v2\nv_and_b32 v3, 4, v0\nv_lshlrev_b32 v3, 3, v3\nv_add_u32 v2, v2, v3')
    a('v_and_b32 v3, 8, v0\nv_lshlrev_b32 v3, 1, v3\nv_add_u32 v2, v2, v3\nv_and_b32 v3, 3, v0\nv_lshlrev_b32 v3, 2, v3\nv_add_u32 v2, v2, v3')
    a(f's_lshl_b32 s10, s2, 7\nbuffer_store_dword v8, v2, s[20:23], s10 offen\ns_waitcnt vmcnt(0)\ns_endpgm')
    a(f'{fill}:\ns_waitcnt lgkmcnt(0)')
    srd_off(a, 20, 4, RING, RING_BYTES)
    per = RING_BYTES // 64
    a(f's_sub_u32 s10, s2, 192\ns_mul_i32 s10, s10, {per}\nv_lshlrev_b32 v2, 4, v0')
    for i in range(4): a(f'v_mov_b32 v{4+i}, -1')
    for k in range(per // 16384):
        a('buffer_store_dwordx4 v[4:7], v2, s[20:23], s10 offen\ns_add_u32 s10, s10, 16384')
    srd_off(a, 24, 4, CTL, 65536)
    a('s_sub_u32 s10, s2, 192\ns_lshl_b32 s10, s10, 10\nv_mov_b32 v8, 0\nv_cmp_gt_u32 vcc, 0x100, v0\nv_lshlrev_b32 v3, 2, v0\ns_and_saveexec_b64 s[28:29], vcc')
    a('buffer_store_dword v8, v3, s[24:27], s10 offen')
    a(f's_waitcnt vmcnt(0)\n{end}:\ns_endpgm')
    kernel_desc(a, label, 48, 48)
    return (label, 256, 1024, 2048)

def ln_body(a, first, stb, sq, lds0=0, sc=''):
    X = 32
    if first: srd(a, 12, 6, 4*MB)
    else: srd_off(a, 12, 4, X1F, 4*MB)
    srd_off(a, 16, 4, MODF + (0 if first else 3*4096), 2*4096)
    srd_off(a, 20, 4, H1F if first else H2F, 4*MB)
    a('v_and_b32 v2, 31, v0\nv_lshrrev_b32 v3, 5, v0')
    if first:
        a(f'v_lshlrev_b32 v4, 11, v2\nv_lshlrev_b32 v5, 4, v3\nv_add_u32 v4, v4, v5')
        a(f's_lshl_b32 s24, s{stb}, 16\ns_lshl_b32 s25, s3, 9\ns_add_u32 s24, s24, s25')
        bs, bsh = 32, 5
    else:
        a(f'v_lshlrev_b32 v4, 4, v0\ns_lshl_b32 s24, s{stb}, 16\ns_lshl_b32 s25, s3, 14\ns_add_u32 s24, s24, s25')
        bs, bsh = 1024, 10
    for g in range(4):
        a(f's_add_u32 s25, s{sq}, {g}\ns_and_b32 s25, s25, 3\ns_lshl_b32 s25, s25, {bsh+2}\ns_add_u32 s25, s25, s24')
        for i in range(4):
            a(f'buffer_load_dwordx4 {vr(X+16*g+4*i,4)}, v4, s[12:15], s25 offen offset:{bs*i}{"" if first else sc}')
    a(f's_lshl_b32 s25, s3, 10\ns_lshl_b32 s26, s{sq}, 8\ns_add_u32 s25, s25, s26\nv_lshlrev_b32 v5, 5, v3')
    a('s_add_u32 s26, s25, 4096')
    M = 96
    for i in range(4):
        for h in range(2):
            a(f'buffer_load_dwordx4 {vr(M+8*i+4*h,4)}, v5, s[16:19], s25 offen offset:{64*i+16*h}')
            a(f'buffer_load_dwordx4 {vr(M+32+8*i+4*h,4)}, v5, s[16:19], s26 offen offset:{64*i+16*h}')
    a('v_mov_b32 v6, 0x3f803f80')
    for i in range(4): a(f'v_mov_b32 v{8+i}, 0')
    for g in range(4):
        a(f's_waitcnt vmcnt({16+12-4*g})')
        for r in range(0, 16, 2):
            x = X + 16*g + r
            a(f'v_dot2c_f32_bf16 v8, v{x}, v6\nv_dot2c_f32_bf16 v9, v{x}, v{x}')
            a(f'v_dot2c_f32_bf16 v10, v{x+1}, v6\nv_dot2c_f32_bf16 v11, v{x+1}, v{x+1}')
    a('v_add_f32 v8, v8, v10\nv_add_f32 v9, v9, v11\nv_mov_b32 v10, v8\nv_mov_b32 v11, v9')
    a('v_permlane32_swap_b32 v8, v10\nv_permlane32_swap_b32 v9, v11\nv_add_f32 v8, v8, v10\nv_add_f32 v9, v9, v11')
    a(f'v_lshlrev_b32 v7, 3, v2\ns_lshl_b32 s25, s3, 8\nv_add_u32 v12, s25, v7\nds_write_b64 v12, v[8:9] offset:{lds0}')
    if first:
        for i in range(4):
            a(f'v_permlane32_swap_b32 v{X+4*i}, v{X+4*i+2}\nv_permlane32_swap_b32 v{X+4*i+1}, v{X+4*i+3}')
    a(f's_lshl_b32 s24, s{stb}, 16\ns_lshl_b32 s25, s3, 14\ns_add_u32 s24, s24, s25\ns_lshl_b32 s25, s{sq}, 12\ns_add_u32 s24, s24, s25\nv_lshlrev_b32 v4, 4, v0')
    if first:
        srd_off(a, 12, 4, X1F, 4*MB)
        for i in range(4): a(f'buffer_store_dwordx4 {vr(X+4*i,4)}, v4, s[12:15], s24 offen offset:{1024*i}{sc}')
    a('s_waitcnt lgkmcnt(0)\ns_barrier')
    for w in range(4): a(f'ds_read_b64 {vr(8+2*w,2)}, v7 offset:{lds0+256*w}')
    a('s_waitcnt lgkmcnt(0)')
    a('v_add_f32 v8, v8, v10\nv_add_f32 v9, v9, v11\nv_add_f32 v12, v12, v14\nv_add_f32 v13, v13, v15\nv_add_f32 v8, v8, v12\nv_add_f32 v9, v9, v13')
    a('v_mul_f32 v8, 0x3a800000, v8\nv_mul_f32 v9, 0x3a800000, v9\nv_fma_f32 v9, -v8, v8, v9\nv_max_f32 v9, 0, v9')
    rnd2(a, 8, 9, 10)
    a('v_add_f32 v9, 0x3727c5ac, v9'); rnd1(a, 9)
    a('v_sqrt_f32 v9, v9'); rnd1(a, 9)
    a(f'v_rcp_f32 v9, v9\ns_waitcnt vmcnt({4 if first else 0})')
    for i in range(4):
        T = 12
        for r in range(4): unpack(a, T+2*r, T+2*r+1, X+4*i+r)
        for e in range(8): a(f'v_sub_f32 v{T+e}, v{T+e}, v8')
        for r in range(4): a(f'v_cvt_pk_bf16_f32 v{T+8+r}, v{T+2*r}, v{T+2*r+1}')
        for r in range(4): unpack(a, T+2*r, T+2*r+1, T+8+r)
        for e in range(8): a(f'v_mul_f32 v{T+e}, v{T+e}, v9')
        for r in range(4): a(f'v_cvt_pk_bf16_f32 v{T+8+r}, v{T+2*r}, v{T+2*r+1}')
        for r in range(4): unpack(a, T+2*r, T+2*r+1, T+8+r)
        for e in range(8): a(f'v_mul_f32 v{T+e}, v{T+e}, v{M+32+8*i+e}')
        for r in range(4): a(f'v_cvt_pk_bf16_f32 v{T+8+r}, v{T+2*r}, v{T+2*r+1}')
        for r in range(4): unpack(a, T+2*r, T+2*r+1, T+8+r)
        for e in range(8): a(f'v_add_f32 v{T+e}, v{T+e}, v{M+8*i+e}')
        for r in range(4): a(f'v_cvt_pk_bf16_f32 v{X+4*i+r}, v{T+2*r}, v{T+2*r+1}')
        a(f'buffer_store_dwordx4 {vr(X+4*i,4)}, v4, s[20:23], s24 offen offset:{1024*i}{sc}')

def ln_kernel(a, label, first):
    kernel_begin(a, label); end = a.label('end')
    entry(a, 256, end)
    a('s_load_dwordx2 s[4:5], s[0:1], 112\ns_load_dwordx2 s[6:7], s[0:1], 0\ns_lshr_b32 s8, s2, 2\ns_and_b32 s9, s2, 3\ns_waitcnt lgkmcnt(0)')
    ln_body(a, first, 8, 9)
    a(f's_waitcnt vmcnt(0)\n{end}:\ns_endpgm')
    kernel_desc(a, label, 160, 160)
    return (label, 256, 256, 1024)

SCALE = '0x3db504f3'
LOG2E = '0x3fb8aa3b'
def att_body(a, sseg, shead, sc=''):
    Q, K, KMr, V, VMr, S, SM, O, T = 8, 40, 72, 104, 136, 152, 168, 8, 184
    srd_off(a, 12, 4, QF, 104*MB - QF)
    a(f's_lshl_b32 s16, s{sseg}, 18\ns_lshl_b32 s17, s{shead}, 13\ns_add_u32 s16, s16, s17')
    a(f's_add_u32 s17, s16, {KF-QF}\ns_add_u32 s18, s16, {VT-QF}\ns_add_u32 s19, s16, {OF-QF}')
    a(f's_lshl_b32 s20, s{sseg}, 16\ns_lshl_b32 s21, s{shead}, 11\ns_add_u32 s20, s20, s21\ns_add_u32 s21, s20, {VM-QF}\ns_add_u32 s20, s20, {KM-QF}')
    a('v_lshlrev_b32 v2, 4, v0\nv_add_u32 v3, 4096, v2\nv_lshlrev_b32 v5, 3, v0')
    a('v_lshrrev_b32 v6, 5, v0\nv_lshlrev_b32 v4, 7, v6\nv_and_b32 v7, 7, v0\nv_lshlrev_b32 v7, 4, v7\nv_add_u32 v4, v4, v7')
    for b in range(8):
        va = 2 if b < 4 else 3
        a(f'buffer_load_dwordx4 {vr(Q+4*b,4)}, v{va}, s[12:15], s16 offen offset:{(b%4)*1024}{sc}')
        a(f'buffer_load_dwordx4 {vr(K+4*b,4)}, v{va}, s[12:15], s17 offen offset:{(b%4)*1024}{sc}')
        a(f'buffer_load_dwordx4 {vr(KMr+4*b,4)}, v4, s[12:15], s20 offen offset:{b*256} sc1')
    for b in range(8):
        a(f'buffer_load_dwordx4 {vr(V+4*b,4)}, v{2 if b < 4 else 3}, s[12:15], s18 offen offset:{(b%4)*1024}{sc}')
    for e in range(4):
        a(f'buffer_load_dwordx2 {vr(VMr+4*e,2)}, v5, s[12:15], s21 offen offset:{e*512} sc1')
        a(f'v_mov_b32 v{VMr+4*e+2}, 0\nv_mov_b32 v{VMr+4*e+3}, 0')
    a('v_and_b32 v7, 31, v0\nv_lshlrev_b32 v6, 2, v6\nv_sub_u32 v7, v7, v6')
    for b in range(8):
        a(f's_waitcnt vmcnt({12 + 3*(7-b)})')
        a(f'v_mfma_f32_32x32x16_bf16 {vr(S,16)}, {vr(K+4*b,4)}, {vr(Q+4*b,4)}, {vr(S,16) if b else 0}')
        a(f'v_mfma_f32_32x32x16_bf16 {vr(SM,16)}, {vr(KMr+4*b,4)}, {vr(Q+4*b,4)}, {vr(SM,16) if b else 0}')
    vals = [S+r for r in range(16)] + [SM+r for r in range(4)]
    prs = [(vals[2*i], vals[2*i+1]) for i in range(10)]
    for n, (x, y) in enumerate(prs): a(f'v_cvt_pk_bf16_f32 v{T+n}, v{x}, v{y}')
    for n, (x, y) in enumerate(prs): unpack(a, x, y, T+n)
    for x in vals: a(f'v_mul_f32 v{x}, {SCALE}, v{x}')
    for n, (x, y) in enumerate(prs): a(f'v_cvt_pk_bf16_f32 v{T+n}, v{x}, v{y}')
    for n, (x, y) in enumerate(prs): unpack(a, x, y, T+n)
    a('v_mov_b32 v6, 0xff800000')
    for r in range(16):
        a(f'v_cmp_le_i32 s[{24+2*(r%4)}:{25+2*(r%4)}], {(r//4)*8 + r%4}, v7')
        if r % 4 == 3:
            for k in range(4): a(f'v_cndmask_b32 v{S+r-3+k}, v6, v{S+r-3+k}, s[{24+2*k}:{25+2*k}]')
    a(f'v_max3_f32 v{T}, v{vals[0]}, v{vals[1]}, v{vals[2]}\nv_max3_f32 v{T+1}, v{vals[3]}, v{vals[4]}, v{vals[5]}')
    for n in range(6, 18, 4):
        a(f'v_max3_f32 v{T}, v{T}, v{vals[n]}, v{vals[n+1]}\nv_max3_f32 v{T+1}, v{T+1}, v{vals[n+2]}, v{vals[n+3]}')
    a(f'v_max3_f32 v{T}, v{T}, v{vals[18]}, v{vals[19]}\nv_max_f32 v{T}, v{T}, v{T+1}')
    xsum_swap(a, T, T+1, 32, 'max')
    a(f'v_mul_f32 v{T}, 0xbfb8aa3b, v{T}\ns_mov_b32 s22, {LOG2E}')
    for x in vals: a(f'v_fma_f32 v{x}, v{x}, s22, v{T}')
    for x in vals: a(f'v_exp_f32 v{x}, v{x}')
    a(f'v_add_f32 v{T}, v{vals[0]}, v{vals[1]}\nv_add_f32 v{T+1}, v{vals[2]}, v{vals[3]}')
    for n in range(4, 20, 2): a(f'v_add_f32 v{T}, v{T}, v{vals[n]}\nv_add_f32 v{T+1}, v{T+1}, v{vals[n+1]}')
    a(f'v_add_f32 v{T}, v{T}, v{T+1}')
    xsum_swap(a, T, T+1, 32)
    a(f'v_rcp_f32 v{T}, v{T}')
    for x in vals: a(f'v_mul_f32 v{x}, v{x}, v{T}')
    P = T + 4
    for n, (x, y) in enumerate(prs): a(f'v_cvt_pk_bf16_f32 v{P+n}, v{x}, v{y}')
    a(f'v_mov_b32 v{P+10}, 0\nv_mov_b32 v{P+11}, 0\ns_waitcnt vmcnt(0)')
    for k in range(3):
        for e in range(4):
            A = vr(V+8*e+4*k, 4) if k < 2 else vr(VMr+4*e, 4)
            a(f'v_mfma_f32_32x32x16_bf16 {vr(O+16*e,16)}, {A}, {vr(P+4*k,4)}, {vr(O+16*e,16) if k else 0}')
    for e in range(4):
        for h in range(2):
            b = 2*e + h
            for r in range(4): a(f'v_cvt_pk_bf16_f32 v{KMr+4*b+r}, v{O+16*e+8*h+2*r}, v{O+16*e+8*h+2*r+1}')
            a(f'buffer_store_dwordx4 {vr(KMr+4*b,4)}, v{2 if b < 4 else 3}, s[12:15], s19 offen offset:{(b%4)*1024}{sc}')

def att_kernel(a, label):
    kernel_begin(a, label); end = a.label('end')
    entry(a, 512, end)
    a('s_load_dwordx2 s[4:5], s[0:1], 112\ns_lshr_b32 s8, s2, 3\ns_and_b32 s9, s2, 7\ns_lshl_b32 s9, s9, 2\ns_add_u32 s9, s9, s3\ns_waitcnt lgkmcnt(0)')
    att_body(a, 8, 9)
    a(f's_waitcnt vmcnt(0)\n{end}:\ns_endpgm')
    kernel_desc(a, label, 208, 208)
    return (label, 512, 256, 0)
```

```python
import sys
from asmlib import *
from layout import *
import hazard
from k_small import *
from k_gemm import *
import k_chain, k_main
def build(path, fl=''):
    a = Asm(); L = []
    L.append(mod_kernel(a, 'mod_kernel'))
    L.append(ln_kernel(a, 'ln1_kernel', True))
    k_chain.TIMING = 't' in fl; k_chain.PROF = k_main.PROF = 'P' in fl or 't' in fl
    k_chain.EXPF = fl
    L.append(k_main.main_kernel(a, 'main_kernel', 's' in fl))
    t, n = hazard.fix(a.text())
    open(path, 'w').write(header(L) + t + '\n')
    print('nops added', n, 'bytes', len(t))
if __name__ == '__main__':
    build(sys.argv[1], sys.argv[2] if len(sys.argv) > 2 else '')
```
